```python
import torch

def _softmax(x, axis=-1):
    return torch.softmax(x, dim=axis)
def _gelu(x):
    return torch.nn.functional.gelu(x, approximate="tanh")
def _silu(x):
    return torch.nn.functional.silu(x)
def _sigmoid(x):
    return torch.sigmoid(x)
def _layernorm(x, axis=-1, eps=1e-5):
    m = x.mean(dim=axis, keepdim=True)
    v = x.var(dim=axis, keepdim=True, unbiased=False)
    return (x - m) / torch.sqrt(v + eps)
def _scatter_add(tgt, idx, src, axis=0):
    return tgt.clone().index_add_(axis, idx, src)
def _segment_sum(src, seg, n):
    out = torch.zeros((n,) + src.shape[1:], dtype=src.dtype)
    return out.index_add_(0, seg, src)
def _pad(x, pw):
    flat = tuple(v for pair in reversed(pw) for v in pair)
    return torch.nn.functional.pad(x, flat)

kernel_name = 'parallel_sum__spectral_fnet__dense_activation_relu__prompt'

def setup_inputs():

    _w = (lambda a: (lambda t: t.to(torch.bfloat16) if t.is_floating_point() else t)(torch.as_tensor(a)))
    def _A_setup():
        B, S, D = 1, 2048, 512
        ns = torch.arange(S)[:, None] * torch.arange(S)[None, :]
        nd = torch.arange(D)[:, None] * torch.arange(D)[None, :]
        Ws_re = torch.cos(-2.0 * torch.pi * ns / S).to(float)
        Ws_im = torch.sin(-2.0 * torch.pi * ns / S).to(float)
        Wd_re = torch.cos(-2.0 * torch.pi * nd / D).to(float)
        Wd_im = torch.sin(-2.0 * torch.pi * nd / D).to(float)
        return {
            "x": _w((lambda *s: torch.randn(*s, dtype=torch.bfloat16) * 0.05)(B, S, D)),
            "dft_seq_re": _w(Ws_re),
            "dft_seq_im": _w(Ws_im),
            "dft_hid_re": _w(Wd_re),
            "dft_hid_im": _w(Wd_im),
        }
    _A_in = _A_setup()

    def _B_setup():
        B, S, D, Dff = 1, 2048, 512, 1792
        return {
            "x": _w((lambda *s: torch.randn(*s, dtype=torch.bfloat16) * 0.05)(B, S, D)),
            "w1": _w((lambda *s: torch.randn(*s, dtype=torch.bfloat16) * 0.4)(D, Dff)),
            "w2": _w((lambda *s: torch.randn(*s, dtype=torch.bfloat16) * 0.4)(Dff, D)),
        }
    _B_in = _B_setup()

    return {
        "A_x": _A_in["x"],
        "A_dft_seq_re": _A_in["dft_seq_re"],
        "A_dft_seq_im": _A_in["dft_seq_im"],
        "A_dft_hid_re": _A_in["dft_hid_re"],
        "A_dft_hid_im": _A_in["dft_hid_im"],
        "B_x": _B_in["x"],
        "B_w1": _B_in["w1"],
        "B_w2": _B_in["w2"],
    }

def reference(A_x, A_dft_seq_re, A_dft_seq_im, A_dft_hid_re, A_dft_hid_im, B_x, B_w1, B_w2):
    def _A_ref(x, dft_seq_re, dft_seq_im, dft_hid_re, dft_hid_im):
        a = torch.einsum("bsd,ed->bse", x, dft_hid_re)
        b = torch.einsum("bsd,ed->bse", x, dft_hid_im)
        y = torch.einsum("ts,bse->bte", dft_seq_re, a) - torch.einsum("ts,bse->bte", dft_seq_im, b)
        return y

    def _B_ref(x, w1, w2):
        h = torch.einsum("bsd,df->bsf", x, w1)
        zero = torch.zeros_like(h)
        h = torch.maximum(h, zero)
        return torch.einsum("bsf,fd->bsd", h, w2)

    x = A_x
    xn = _layernorm(x, axis=-1)
    return x + _A_ref(xn, A_dft_seq_re, A_dft_seq_im, A_dft_hid_re, A_dft_hid_im) + _B_ref(xn, B_w1, B_w2)
```

```python
import sys

S, D, F = 2048, 512, 1792
H_OFF, ABT_OFF, W2T_OFF = 0, 0x800000, 0xA00000
H_BYTES = S * F * 2
ABT_PITCH = 2112
ABT_BYTES = 512 * ABT_PITCH
W2T_BYTES = 512 * F * 2
OOB = 0x40000000

class Emit:
    def __init__(self):
        self.lines = []
    def __call__(self, s=""):
        import re as _re
        m = _re.search(r"offset:(-?\d+)", s)
        if m:
            o = int(m.group(1))
            if s.lstrip().startswith("buffer_"): assert 0 <= o <= 4095, s
            if s.lstrip().startswith("ds_"): assert 0 <= o <= 65535, s
        self.lines.append("    " + s if s and not s.endswith(":") else s)
    def label(self, s):
        self.lines.append(s + ":")
    def text(self):
        return "\n".join(self.lines) + "\n"

def vr(base, n=4):
    return f"v[{base}:{base+n-1}]"
def ar(base, n=4):
    return f"a[{base}:{base+n-1}]"
def sr(base, n=4):
    return f"s[{base}:{base+n-1}]"

def make_srd(e, dst, lo, hi, nbytes, add=0):
    if add:
        e(f"s_add_u32 s{dst}, s{lo}, {add}")
        e(f"s_addc_u32 s{dst+1}, s{hi}, 0")
    else:
        e(f"s_mov_b32 s{dst}, s{lo}")
        e(f"s_mov_b32 s{dst+1}, s{hi}")
    e(f"s_and_b32 s{dst+1}, s{dst+1}, 0xffff")
    e(f"s_mov_b32 s{dst+2}, {nbytes}")
    e(f"s_mov_b32 s{dst+3}, 0x00020000")

W1BASE = 0
WPBASE = 114688
WPPITCH = 1056
TBASE = WPBASE + 32 * WPPITCH
KA_LDS = TBASE + 8192
CSX = 0

def gen_ka():
    e = Emit()
    e.label("fnet_ka_kernel")
    e("s_cmp_ge_u32 s2, 256")
    e("s_cbranch_scc1 KA_END")
    e("s_load_dwordx2 s[4:5], s[0:1], 0")
    e("s_load_dwordx4 s[8:11], s[0:1], 24")
    e("s_load_dwordx4 s[12:15], s[0:1], 48")
    e("s_load_dwordx2 s[16:17], s[0:1], 80")
    e("s_and_b32 s3, s2, 7")
    e("s_lshr_b32 s18, s2, 3")
    e("s_and_b32 s19, s3, 3")
    e("s_lshl_b32 s19, s19, 2")
    e("s_and_b32 s20, s18, 3")
    e("s_add_u32 s19, s19, s20")
    e("s_lshr_b32 s20, s3, 2")
    e("s_lshl_b32 s20, s20, 3")
    e("s_lshr_b32 s21, s18, 2")
    e("s_add_u32 s20, s20, s21")
    e("v_lshrrev_b32 v1, 6, v0")
    e("v_and_b32 v0, 63, v0")
    e("v_and_b32 v2, 15, v0")
    e("v_readfirstlane_b32 s21, v1")
    e("v_lshrrev_b32 v3, 4, v0")
    e("s_waitcnt lgkmcnt(0)")
    SX, SW1, SWPA, SWPB, SW2, SH, SAB, SW2T = 24, 28, 32, 36, 40, 44, 48, 52
    make_srd(e, SX, 4, 5, S * D * 2)
    make_srd(e, SW1, 12, 13, D * F * 2)
    make_srd(e, SW2, 14, 15, F * D * 2)
    make_srd(e, SH, 16, 17, H_BYTES, H_OFF)
    make_srd(e, SAB, 16, 17, ABT_BYTES, ABT_OFF)
    make_srd(e, SW2T, 16, 17, W2T_BYTES, W2T_OFF)
    e("s_cmp_lt_u32 s20, 8")
    e(f"s_cselect_b32 s{SWPB}, s8, s10")
    e(f"s_cselect_b32 s{SWPB+1}, s9, s11")
    e(f"s_and_b32 s{SWPB+1}, s{SWPB+1}, 0xffff")
    e(f"s_mov_b32 s{SWPB+2}, {D*D*2}")
    e(f"s_mov_b32 s{SWPB+3}, 0x00020000")
    e("s_cmp_eq_u32 s21, 0")
    e("s_cselect_b32 s22, 9, 8")
    e("s_cmp_lt_u32 s20, s22")
    e(f"s_cselect_b32 s{SWPA}, s8, s10")
    e(f"s_cselect_b32 s{SWPA+1}, s9, s11")
    e(f"s_and_b32 s{SWPA+1}, s{SWPA+1}, 0xffff")
    e(f"s_mov_b32 s{SWPA+2}, {D*D*2}")
    e(f"s_mov_b32 s{SWPA+3}, 0x00020000")
    e("s_lshl_b32 s22, s19, 6")
    e("s_lshl_b32 s23, s21, 4")
    e("s_add_u32 s22, s22, s23")
    e("v_add_u32 v4, s22, v2")
    e("v_sub_u32 v5, 0x800, v4")
    e("v_cmp_eq_u32 vcc, 0, v4")
    e("v_mov_b32 v6, 0x400")
    e("s_nop 0")
    e("v_cndmask_b32 v5, v5, v6, vcc")
    e("v_lshlrev_b32 v7, 4, v3")
    e("v_lshl_add_u32 v8, v4, 10, v7")
    e("v_lshl_add_u32 v9, v5, 10, v7")
    XF = 128
    def xf(t, ks): return XF + 64 * t + 4 * ks
    for t in range(2):
        for ks in range(16):
            e(f"buffer_load_dwordx4 {vr(xf(t,ks))}, v{8+t}, {sr(SX)}, 0 offen offset:{64*ks}")
    e("s_lshl_b32 s23, s20, 5")
    e("s_lshl_b32 s56, s21, 3")
    e("s_add_u32 s23, s23, s56")
    e("s_lshl_b32 s23, s23, 10")
    e("v_lshlrev_b32 v10, 4, v0")
    e(f"s_mul_i32 s57, s56, {WPPITCH}")
    e(f"s_add_u32 s57, s57, {WPBASE}")
    for rr in range(8):
        e(f"s_add_u32 m0, s57, {rr*WPPITCH}")
        e(f"s_add_u32 s58, s23, {rr*1024}")
        e(f"buffer_load_dwordx4 v10, {sr(SWPA if rr==0 else SWPB)}, s58 offen lds")
    W1V = 12
    e("s_mul_i32 s59, s20, 224")
    e("s_mov_b32 s60, 4682")
    e("s_mov_b32 s61, 3584")
    for u in range(7):
        z, p, cc, k, t1, t2 = 20, 21, 22, 23, 24, 25
        e(f"v_add_u32 v{z}, {64*u}, v0")
        e(f"v_mul_lo_u32 v{p}, v{z}, s60")
        e(f"v_lshrrev_b32 v{p}, 16, v{p}")
        e(f"v_mul_u32_u24 v{cc}, 14, v{p}")
        e(f"v_sub_u32 v{cc}, v{z}, v{cc}")
        e(f"v_and_b32 v{k}, 0x13, v{p}")
        e(f"v_and_b32 v{t1}, 4, v{p}")
        e(f"v_lshlrev_b32 v{t1}, 1, v{t1}")
        e(f"v_and_b32 v{t2}, 8, v{p}")
        e(f"v_lshrrev_b32 v{t2}, 1, v{t2}")
        e(f"v_or3_b32 v{k}, v{k}, v{t1}, v{t2}")
        e(f"v_mul_lo_u32 v{k}, v{k}, s61")
        e(f"v_lshl_add_u32 v{k}, v{cc}, 4, v{k}")
        e(f"v_add_u32 v{W1V+u}, s59, v{k}")
    def w1_group(ph):
        e(f"s_add_u32 s62, s21, {4*ph}")
        e("s_mul_i32 s63, s62, 114688")
        e("s_mul_i32 s62, s62, 7168")
        for u in range(7):
            e(f"s_add_u32 m0, s62, {W1BASE + u*1024}")
            e("s_nop 0")
            e(f"buffer_load_dwordx4 v{W1V+u}, {sr(SW1)}, s63 offen lds")
    w1_group(0); w1_group(1); w1_group(2)
    e("v_lshrrev_b32 v26, 2, v0")
    e("v_and_b32 v27, 3, v0")
    e("v_lshlrev_b32 v27, 4, v27")
    e("v_lshl_add_u32 v26, v26, 10, v27")
    e("s_mul_i32 s64, s20, 112")
    e("s_lshl_b32 s65, s21, 4")
    e("s_add_u32 s64, s64, s65")
    e("s_lshl_b32 s64, s64, 10")
    e("s_lshl_b32 s65, s19, 6")
    e("s_add_u32 s64, s64, s65")
    e("s_lshl_b32 s65, s21, 10")
    for n in range(2):
        e(f"s_add_u32 m0, s65, {TBASE + n*4096}")
        e(f"s_add_u32 s66, s64, {n*64*1024}")
        e(f"buffer_load_dwordx4 v26, {sr(SW2)}, s66 offen lds")
    e("s_waitcnt vmcnt(31)")
    w1_group(3)
    ONES = 92
    for r in range(4):
        e(f"v_mov_b32 v{ONES+r}, 0x3f803f80")
    SUM, SQ = 30, 32
    for t in range(2):
        e(f"v_mov_b32 v{SUM+t}, 0")
        e(f"v_mov_b32 v{SQ+t}, 0")
    for ks in range(16):
        for r in range(4):
            for t in range(2):
                e(f"v_dot2c_f32_bf16 v{SUM+t}, v{xf(t,ks)+r}, v{ONES}")
                e(f"v_dot2c_f32_bf16 v{SQ+t}, v{xf(t,ks)+r}, v{xf(t,ks)+r}")
    e("v_xor_b32 v34, 16, v0")
    e("v_lshlrev_b32 v34, 2, v34")
    e("v_xor_b32 v35, 32, v0")
    e("v_lshlrev_b32 v35, 2, v35")
    for pv in (34, 35):
        for r in range(4):
            e(f"ds_bpermute_b32 v{36+r}, v{pv}, v{SUM+r}")
        e("s_waitcnt lgkmcnt(0)")
        for r in range(4):
            e(f"v_add_f32 v{SUM+r}, v{SUM+r}, v{36+r}")
    MB, RR = 40, 42
    e("s_mov_b32 s67, 0x3b000000")
    e("s_mov_b32 s68, 0x3727c5ac")
    for t in range(2):
        e(f"v_mul_f32 v{36+t}, s67, v{SUM+t}")
        e(f"v_mul_f32 v{38+t}, s67, v{SQ+t}")
        e(f"v_fma_f32 v{38+t}, -v{36+t}, v{36+t}, v{38+t}")
        e(f"v_max_f32 v{38+t}, 0, v{38+t}")
        e(f"v_cvt_pk_bf16_f32 v{MB+t}, v{36+t}, v{36+t}")
        e(f"v_lshlrev_b32 v{MB+t}, 16, v{MB+t}")
        e(f"v_cvt_pk_bf16_f32 v{38+t}, v{38+t}, v{38+t}")
        e(f"v_lshlrev_b32 v{38+t}, 16, v{38+t}")
        e(f"v_add_f32 v{38+t}, s68, v{38+t}")
        e(f"v_cvt_pk_bf16_f32 v{38+t}, v{38+t}, v{38+t}")
        e(f"v_lshlrev_b32 v{38+t}, 16, v{38+t}")
        e(f"v_sqrt_f32 v{38+t}, v{38+t}")
        e("s_nop 0")
        e(f"v_cvt_pk_bf16_f32 v{38+t}, v{38+t}, v{38+t}")
        e(f"v_lshlrev_b32 v{38+t}, 16, v{38+t}")
        e(f"v_rcp_f32 v{RR+t}, v{38+t}")
        e("s_nop 0")
    e("v_lshrrev_b32 v44, 1, v3")
    e("v_lshlrev_b32 v44, 4, v44")
    e("v_and_b32 v45, 1, v3")
    e("v_lshl_add_u32 v44, v45, 2, v44")
    e("v_lshrrev_b32 v45, 2, v2")
    e("v_add_u32 v44, v44, v45")
    e("v_mul_u32_u24 v44, 224, v44")
    e("v_and_b32 v45, 3, v0")
    e("v_lshl_add_u32 v44, v45, 3, v44")
    e(f"v_add_u32 v44, {W1BASE}, v44")
    e("v_add_u32 v45, 57344, v44")
    e(f"v_mul_u32_u24 v46, {WPPITCH}, v2")
    e("v_lshl_add_u32 v46, v3, 4, v46")
    e(f"v_add_u32 v46, {WPBASE}, v46")
    NACC = 108
    for a in range(NACC):
        e(f"v_accvgpr_write_b32 a{a}, 0")
    def acc(q, t): return (2 * q + t) * 4
    def csa(q): return 72 + 4 * q
    WF = 96; NSL = 8; LA = 6
    frs = [(ks, q) for ks in range(16) for q in range(9)]
    def nreads(q): return 2 if q < 7 else 1
    def issue(n):
        ks, q = frs[n]
        sl = WF + 4 * (n % NSL)
        if q < 7:
            base = 44 if ks < 8 else 45
            off = 7168 * (ks % 8) + 32 * q
            e(f"ds_read_b64_tr_b16 v[{sl}:{sl+1}], v{base} offset:{off}")
            e(f"ds_read_b64_tr_b16 v[{sl+2}:{sl+3}], v{base} offset:{off+1792}")
        else:
            e(f"ds_read_b128 {vr(sl)}, v46 offset:{16*WPPITCH*(q-7) + 64*ks}")
    vm_after = {0: 23, 1: 16, 2: 9, 3: 0}
    def sync(ph):
        e(f"s_waitcnt vmcnt({vm_after[ph]})")
        e("s_barrier")
    sync(0)
    N = len(frs)
    for n in range(LA):
        issue(n)
    for n in range(N):
        ks, q = frs[n]
        m = n + LA
        if m < N:
            if m % 36 == 0:
                sync(m // 36)
            issue(m)
        out = sum(nreads(frs[x][1]) for x in range(n + 1, min(N, n + LA + 1)))
        e(f"s_waitcnt lgkmcnt({out})")
        sl = WF + 4 * (n % NSL)
        for t in range(2):
            if q < 7:
                e(f"v_mfma_f32_16x16x32_bf16 {ar(acc(q,t))}, {vr(sl)}, {vr(xf(t,ks))}, {ar(acc(q,t))}")
            else:
                e(f"v_mfma_f32_16x16x32_bf16 {ar(acc(q,t))}, {vr(xf(t,ks))}, {vr(sl)}, {ar(acc(q,t))}")
        if q == 0:
            pass
        e(f"s_cmp_lg_u32 s21, {ks%4}")
        e(f"s_cbranch_scc1 KA_NOCS_{n}")
        if q < 7:
            e(f"v_mfma_f32_16x16x32_bf16 {ar(csa(q))}, {vr(sl)}, {vr(ONES)}, {ar(csa(q))}")
        else:
            e(f"v_mfma_f32_16x16x32_bf16 {ar(csa(q))}, {vr(ONES)}, {vr(sl)}, {ar(csa(q))}")
        e.label(f"KA_NOCS_{n}")
    e("v_and_b32 v47, 1, v3")
    e("v_lshlrev_b32 v47, 3, v47")
    e("v_lshrrev_b32 v48, 2, v2")
    e("v_add_u32 v47, v47, v48")
    e("v_lshlrev_b32 v47, 6, v47")
    e("v_lshrrev_b32 v48, 1, v3")
    e("v_lshl_add_u32 v47, v48, 5, v47")
    e("v_and_b32 v48, 3, v0")
    e("v_lshl_add_u32 v47, v48, 3, v47")
    e("s_lshl_b32 s65, s21, 10")
    e(f"s_add_u32 s65, s65, {TBASE}")
    e("v_add_u32 v47, s65, v47")
    for n in range(2):
        for h in range(2):
            e(f"ds_read_b64_tr_b16 v[{50+4*n+2*h}:{51+4*n+2*h}], v47 offset:{4096*n + 256*h}")
    e("v_lshrrev_b32 v48, 1, v3")
    e("v_lshl_add_u32 v48, v48, 4, v2")
    e("s_lshl_b32 s65, s19, 5")
    e("v_add_u32 v48, s65, v48")
    e("v_mul_lo_u32 v48, v48, s61")
    e("v_and_b32 v49, 1, v3")
    e("v_lshl_add_u32 v48, v49, 4, v48")
    e("s_mul_i32 s65, s20, 224")
    e("s_lshl_b32 s66, s21, 5")
    e("s_add_u32 s65, s65, s66")
    e("v_add_u32 v48, s65, v48")
    e("s_waitcnt lgkmcnt(0)")
    e(f"buffer_store_dwordx4 v[50:53], v48, {sr(SW2T)}, 0 offen")
    e("s_cmp_eq_u32 s21, 3")
    e("s_cbranch_scc1 KA_NOT2")
    e(f"buffer_store_dwordx4 v[54:57], v48, {sr(SW2T)}, 0 offen offset:128")
    e.label("KA_NOT2")
    e("s_barrier")
    e("v_lshlrev_b32 v47, 4, v0")
    e("s_mul_i32 s65, s21, 9216")
    e("v_add_u32 v48, s65, v47")
    CSV = 128
    e("s_nop 7")
    for q in range(9):
        for r in range(4):
            e(f"v_accvgpr_read_b32 v{CSV+4*q+r}, a{csa(q)+r}")
    for q in range(9):
        e(f"ds_write_b128 v48, {vr(CSV+4*q)} offset:{CSX + 1024*q}")
    e("s_waitcnt lgkmcnt(0)")
    e("s_barrier")
    TMP = 168
    for q in range(9):
        for wv in range(4):
            e(f"ds_read_b128 {vr(TMP+4*wv)}, v47 offset:{CSX + 9216*wv + 1024*q}")
        e("s_waitcnt lgkmcnt(0)")
        for r in range(4):
            e(f"v_add_f32 v{TMP+r}, v{TMP+r}, v{TMP+4+r}")
            e(f"v_add_f32 v{TMP+8+r}, v{TMP+8+r}, v{TMP+12+r}")
            e(f"v_add_f32 v{CSV+4*q+r}, v{TMP+r}, v{TMP+8+r}")
    e("s_mul_i32 s65, s20, 224")
    for t in range(2):
        e(f"v_mul_lo_u32 v{60+t}, v{4+t}, s61")
        e(f"v_lshl_add_u32 v{60+t}, v3, 3, v{60+t}")
        e(f"v_add_u32 v{60+t}, s65, v{60+t}")
    for q in range(7):
        for t in range(2):
            T0 = 168 + 8 * t
            for r in range(4):
                e(f"v_accvgpr_read_b32 v{T0+r}, a{acc(q,t)+r}")
            for r in range(4):
                e(f"v_fma_f32 v{T0+r}, -v{MB+t}, v{CSV+4*q+r}, v{T0+r}")
            for r in range(4):
                e(f"v_mul_f32 v{T0+r}, v{RR+t}, v{T0+r}")
            for r in range(4):
                e(f"v_max_f32 v{T0+r}, 0, v{T0+r}")
            e(f"v_cvt_pk_bf16_f32 v{T0+4}, v{T0}, v{T0+1}")
            e(f"v_cvt_pk_bf16_f32 v{T0+5}, v{T0+2}, v{T0+3}")
            e(f"buffer_store_dwordx2 v[{T0+4}:{T0+5}], v{60+t}, {sr(SH)}, 0 offen offset:{32*q}")
    MT, RT = 100, 108
    e("v_lshlrev_b32 v80, 4, v3")
    for r in range(4):
        e(f"v_add_u32 v{81+r}, {4*r}, v80") if r else e("v_mov_b32 v81, v80")
    for t in range(2):
        for r in range(4):
            e(f"ds_bpermute_b32 v{MT+4*t+r}, v{81+r}, v{MB+t}")
            e(f"ds_bpermute_b32 v{RT+4*t+r}, v{81+r}, v{RR+t}")
    e("v_mov_b32 v62, 0")
    e("v_mov_b32 v63, 1.0")
    e("v_mov_b32 v68, -1.0")
    e("s_lshl_b32 s65, s20, 5")
    e("v_add_u32 v65, s65, v2")
    e(f"s_mov_b32 s66, {ABT_PITCH}")
    e("v_mul_lo_u32 v66, v65, s66")
    e("v_add_u32 v67, 0x800, v66")
    e("v_lshl_add_u32 v85, v3, 2, s22")
    e("v_lshl_add_u32 v66, v85, 1, v66")
    e("v_cmp_ne_u32 vcc, 0, v85")
    e("s_nop 1")
    e("v_cndmask_b32 v86, v62, v63, vcc")
    e(f"s_mov_b32 s72, {16*ABT_PITCH}")
    e("s_waitcnt lgkmcnt(0)")
    for q in range(7, 9):
        A0, A1, SG = 168, 172, 176
        e(f"v_add_u32 v{SG}, {16*(q-7)}, v65")
        e(f"v_cmp_gt_u32 vcc, 0x101, v{SG}")
        for r in range(4):
            e(f"v_accvgpr_read_b32 v{A0+r}, a{acc(q,0)+r}")
            e(f"v_accvgpr_read_b32 v{A1+r}, a{acc(q,1)+r}")
        e(f"v_cndmask_b32 v{SG}, v68, v63, vcc")
        e(f"v_mul_f32 v{SG+1}, v{SG}, v86")
        for r in range(4):
            e(f"v_fma_f32 v{A0+r}, -v{MT+r}, v{CSV+4*q}, v{A0+r}")
            e(f"v_fma_f32 v{A1+r}, -v{MT+4+r}, v{CSV+4*q}, v{A1+r}")
        for r in range(4):
            e(f"v_mul_f32 v{A0+r}, v{RT+r}, v{A0+r}")
            e(f"v_mul_f32 v{A1+r}, v{RT+4+r}, v{A1+r}")
        for r in range(4):
            e(f"v_fma_f32 v{A0+r}, v{SG+(1 if r==0 else 0)}, v{A1+r}, v{A0+r}")
        e(f"v_cvt_pk_bf16_f32 v{A0+10}, v{A0}, v{A0+1}")
        e(f"v_cvt_pk_bf16_f32 v{A0+11}, v{A0+2}, v{A0+3}")
        so = "0" if q == 7 else "s72"
        e(f"buffer_store_dwordx2 v[{A0+10}:{A0+11}], v66, {sr(SAB)}, {so} offen")
        e("s_cmp_lg_u32 s22, 0")
        e(f"s_cbranch_scc1 KA_S0_{q}")
        e(f"v_cvt_pk_bf16_f32 v{A0+12}, v{A1}, v62")
        e("s_mov_b64 s[70:71], exec")
        e("s_mov_b64 exec, 0xffff")
        e(f"buffer_store_dword v{A0+12}, v67, {sr(SAB)}, {so} offen")
        e("s_mov_b64 exec, s[70:71]")
        e.label(f"KA_S0_{q}")
    e("s_cmp_lg_u32 s19, 0")
    e("s_cbranch_scc1 KA_END")
    e("s_cmp_lg_u32 s21, 1")
    e("s_cbranch_scc1 KA_END")
    e("s_lshl_b32 s65, s20, 5")
    e("v_add_u32 v65, s65, v0")
    e("v_mul_lo_u32 v66, v65, s66")
    e("v_add_u32 v66, 2052, v66")
    e("v_cmp_gt_u32 vcc, 32, v0")
    e("s_and_saveexec_b64 s[70:71], vcc")
    for d in range(15):
        e(f"buffer_store_dword v62, v66, {sr(SAB)}, 0 offen offset:{4*d}")
    e("s_mov_b64 exec, s[70:71]")
    e.label("KA_END")
    e("s_endpgm")
    return e.text(), 256 + NACC

PM_PITCH = 52 * 4
PM_MAT = 48 * PM_PITCH
PM_WAVE = 2 * PM_MAT
PMBASE = 0
ZXBASE = 4 * PM_WAVE
KB_LDS = ZXBASE + 4 * 3 * 4096

def gen_kb():
    e = Emit()
    e.label("fnet_kb_kernel")
    e("s_cmp_ge_u32 s2, 256")
    e("s_cbranch_scc1 KB_END")
    e("s_load_dwordx2 s[4:5], s[0:1], 0")
    e("s_load_dwordx4 s[8:11], s[0:1], 8")
    e("s_load_dwordx2 s[12:13], s[0:1], 64")
    e("s_load_dwordx2 s[16:17], s[0:1], 80")
    e("s_and_b32 s3, s2, 7")
    e("s_lshr_b32 s18, s2, 3")
    e("s_and_b32 s19, s3, 3")
    e("s_lshl_b32 s19, s19, 3")
    e("s_and_b32 s20, s18, 7")
    e("s_add_u32 s19, s19, s20")
    e("s_lshr_b32 s20, s3, 2")
    e("s_lshl_b32 s20, s20, 2")
    e("s_lshr_b32 s21, s18, 3")
    e("s_add_u32 s20, s20, s21")
    e("v_lshrrev_b32 v1, 6, v0")
    e("v_and_b32 v0, 63, v0")
    e("v_and_b32 v2, 15, v0")
    e("v_readfirstlane_b32 s21, v1")
    e("v_lshrrev_b32 v3, 4, v0")
    e("s_waitcnt lgkmcnt(0)")
    SX, SO, SH, SW2T, SAB, SWR, SWI = 24, 28, 32, 36, 40, 44, 48
    make_srd(e, SX, 4, 5, S * D * 2)
    make_srd(e, SO, 12, 13, S * D * 2)
    make_srd(e, SH, 16, 17, H_BYTES, H_OFF)
    make_srd(e, SW2T, 16, 17, W2T_BYTES, W2T_OFF)
    make_srd(e, SAB, 16, 17, ABT_BYTES, ABT_OFF)
    make_srd(e, SWR, 8, 9, S * S * 2)
    make_srd(e, SWI, 10, 11, S * S * 2)
    e("s_mov_b32 s61, 3584")
    e(f"s_mov_b32 s62, {ABT_PITCH}")
    e("s_lshl_b32 s52, s19, 5")
    e("s_lshl_b32 s53, s20, 5")
    e("s_sub_u32 s54, 2016, s52")
    e("s_sub_u32 s55, 480, s53")
    e("s_mul_i32 s56, s21, 896")
    e("s_lshl_b32 s57, s21, 9")
    e("v_lshlrev_b32 v4, 4, v3")
    e("v_lshrrev_b32 v5, 2, v2")
    e("v_lshlrev_b32 v5, 3, v5")
    e("v_and_b32 v6, 3, v2")
    e("v_add_u32 v5, v5, v6")
    e("v_add_u32 v6, s56, v4")
    for q in range(4):
        e(f"v_add_u32 v7, s{53 if q<2 else 55}, v5")
        if q & 1:
            e("v_add_u32 v7, 4, v7")
        e("v_mul_lo_u32 v7, v7, s61")
        e(f"v_add_u32 v{10+q}, v7, v6")
    for tq in range(4):
        e(f"v_add_u32 v7, s{52 if tq<2 else 54}, v2")
        if tq & 1:
            e("v_add_u32 v7, 16, v7")
        e("v_mul_lo_u32 v7, v7, s61")
        e(f"v_add_u32 v{14+tq}, v7, v6")
    e("v_add_u32 v6, s57, v4")
    e(f"v_mov_b32 v8, {OOB}")
    e("s_cmp_eq_u32 s21, 3")
    e("s_cselect_b32 s58, 33, 0")
    for qa in range(3):
        e(f"v_add_u32 v7, {16*qa}, v2")
        e("v_add_u32 v9, s53, v7")
        e("v_mul_lo_u32 v36, v9, s62")
        e("v_add_u32 v37, v36, v6")
        e("v_cmp_gt_u32 vcc, 33, v7")
        e("v_add_u32 v38, 0x800, v36")
        e("v_add_u32 v38, v38, v4")
        e(f"v_cndmask_b32 v{18+qa}, v8, v37, vcc")
        e("v_cmp_gt_u32 vcc, s58, v7")
        e("s_nop 1")
        e(f"v_cndmask_b32 v{30+qa}, v8, v38, vcc")
        e("v_sub_u32 v36, 0x200, v9")
        e("v_mul_lo_u32 v36, v36, s62")
        e("v_add_u32 v37, v36, v6")
        e("v_and_b32 v38, 0xff, v9")
        e("v_cmp_ne_u32 s[64:65], 0, v38")
        e("v_cmp_gt_u32 vcc, 33, v7")
        e("s_nop 1")
        e("s_and_b64 vcc, vcc, s[64:65]")
        e("s_nop 1")
        e(f"v_cndmask_b32 v{24+qa}, v8, v37, vcc")
        e("v_add_u32 v9, s52, v7")
        e("v_lshlrev_b32 v36, 12, v9")
        e("v_add_u32 v37, v36, v6")
        e("v_cmp_gt_u32 vcc, 33, v7")
        e("v_add_u32 v38, 0x800, v36")
        e("v_add_u32 v38, v38, v4")
        e(f"v_cndmask_b32 v{21+qa}, v8, v37, vcc")
        e(f"v_mov_b32 v{27+qa}, v{21+qa}")
        e("v_cmp_gt_u32 vcc, s58, v7")
        e("s_nop 1")
        e(f"v_cndmask_b32 v{33+qa}, v8, v38, vcc")
    NACC = 136
    for a in range(NACC):
        e(f"v_accvgpr_write_b32 a{a}, 0")
    def zacc(q, tq): return (4 * q + tq) * 4
    def cacc(qa, qb): return 64 + (3 * qa + qb) * 4
    def sacc(qa, qb): return 100 + (3 * qa + qb) * 4
    steps = []
    for ks in range(8):
        steps.append(("C", ks)); steps.append(("S", ks))
    steps.append(("X", 0))
    for ks in range(14):
        steps.append(("Z", ks))
    def loads_of(st):
        k, ks = st
        if k == "Z":
            return [(SW2T, 10 + q, 64 * ks) for q in range(4)] + [(SH, 14 + q, 64 * ks) for q in range(4)]
        if k == "C":
            return [(SAB, 18 + q, 64 * ks) for q in range(3)] + [(SWR, 21 + q, 64 * ks) for q in range(3)]
        if k == "S":
            return [(SAB, 24 + q, 64 * ks) for q in range(3)] + [(SWI, 27 + q, 64 * ks) for q in range(3)]
        if k == "X":
            return [(SAB, 30 + q, 0) for q in range(3)] + [(SWR, 33 + q, 0) for q in range(3)]
    RING = 64; NU = 48
    slot = {}
    cnt = 0
    allloads = []
    for si, st in enumerate(steps):
        for li, ld in enumerate(loads_of(st)):
            slot[(si, li)] = RING + 4 * (cnt % NU)
            allloads.append((si, li, ld))
            cnt += 1
    issued = 0
    consumed = 0
    def issue_upto(limit):
        nonlocal issued
        while issued < len(allloads) and issued < limit:
            si, li, (srd, vo, imm) = allloads[issued]
            e(f"buffer_load_dwordx4 {vr(slot[(si,li)])}, v{vo}, {sr(srd)}, 0 offen offset:{imm}")
            issued += 1
    issue_upto(NU)
    for si, st in enumerate(steps):
        nl = len(loads_of(st))
        outst = issued - (consumed + nl)
        e(f"s_waitcnt vmcnt({outst})")
        k, ks = st
        if k == "Z":
            for q in range(4):
                for tq in range(4):
                    e(f"v_mfma_f32_16x16x32_bf16 {ar(zacc(q,tq))}, {vr(slot[(si,q)])}, {vr(slot[(si,4+tq)])}, {ar(zacc(q,tq))}")
        else:
            fa = sacc if k == "S" else cacc
            for qa in range(3):
                for qb in range(3):
                    e(f"v_mfma_f32_16x16x32_bf16 {ar(fa(qa,qb))}, {vr(slot[(si,qa)])}, {vr(slot[(si,3+qb)])}, {ar(fa(qa,qb))}")
        consumed += nl
        issue_upto(consumed + NU)
    e("s_nop 7")
    e("s_nop 7")
    e(f"v_mul_u32_u24 v40, {PM_PITCH}, v2")
    e("v_lshl_add_u32 v40, v3, 4, v40")
    e(f"s_mul_i32 s63, s21, {PM_WAVE}")
    e("v_add_u32 v40, s63, v40")
    for qa in range(3):
        for qb in range(3):
            T0 = 64 + 12 * ((3 * qa + qb) % 4)
            for r in range(4):
                e(f"v_accvgpr_read_b32 v{T0+r}, a{cacc(qa,qb)+r}")
                e(f"v_accvgpr_read_b32 v{T0+4+r}, a{sacc(qa,qb)+r}")
            for r in range(4):
                e(f"v_add_f32 v{T0+8+r}, v{T0+r}, v{T0+4+r}")
                e(f"v_sub_f32 v{T0+4+r}, v{T0+r}, v{T0+4+r}")
            off = PMBASE + 16 * qb * PM_PITCH + 64 * qa
            e(f"ds_write_b128 v40, {vr(T0+8)} offset:{off}")
            e(f"ds_write_b128 v40, {vr(T0+4)} offset:{off+PM_MAT}")
    e("v_lshlrev_b32 v41, 4, v0")
    e(f"v_add_u32 v41, {ZXBASE}, v41")
    for w in range(4):
        e(f"s_cmp_lg_u32 s21, {w}")
        e(f"s_cbranch_scc1 KB_ZW_{w}")
        for d in range(4):
            if d == w: continue
            si = (w - d - 1) % 4
            for tl in range(4):
                q = 2 * (d & 1) + (tl & 1); tq = 2 * (d >> 1) + (tl >> 1)
                T0 = 112 + 4 * tl
                for r in range(4):
                    e(f"v_accvgpr_read_b32 v{T0+r}, a{zacc(q,tq)+r}")
                e(f"ds_write_b128 v41, {vr(T0)} offset:{(d*3+si)*4096 + tl*1024}")
        for tl in range(4):
            q = 2 * (w & 1) + (tl & 1); tq = 2 * (w >> 1) + (tl >> 1)
            for r in range(4):
                e(f"v_accvgpr_read_b32 v{128+4*tl+r}, a{zacc(q,tq)+r}")
        e.label(f"KB_ZW_{w}")
    e("s_and_b32 s64, s21, 1")
    e("s_lshr_b32 s65, s21, 1")
    e("s_cmp_eq_u32 s64, 0")
    e("s_cselect_b32 s66, s53, s55")
    e("s_cmp_eq_u32 s65, 0")
    e("s_cselect_b32 s67, s52, s54")
    e("v_add_u32 v42, s67, v2")
    e("v_lshlrev_b32 v42, 10, v42")
    e("v_lshl_add_u32 v42, v3, 4, v42")
    e("s_lshl_b32 s66, s66, 1")
    e("v_add_u32 v42, s66, v42")
    e(f"buffer_load_dwordx4 v[144:147], v42, {sr(SX)}, 0 offen")
    e(f"buffer_load_dwordx4 v[148:151], v42, {sr(SX)}, 0 offen offset:{16*1024}") if False else None
    e("v_add_u32 v43, 0x4000, v42")
    e(f"buffer_load_dwordx4 v[148:151], v43, {sr(SX)}, 0 offen")
    e("s_waitcnt lgkmcnt(0)")
    e("s_barrier")
    e("s_mul_i32 s63, s21, 12288")
    e("v_add_u32 v41, s63, v41")
    for si in range(3):
        for tl in range(4):
            e(f"ds_read_b128 {vr(64+16*si+4*tl)}, v41 offset:{si*4096 + tl*1024}")
    e("s_waitcnt lgkmcnt(0)")
    for tl in range(4):
        for r in range(4):
            e(f"v_add_f32 v{128+4*tl+r}, v{128+4*tl+r}, v{64+4*tl+r}")
            e(f"v_add_f32 v{80+4*tl+r}, v{80+4*tl+r}, v{96+4*tl+r}")
            e(f"v_add_f32 v{128+4*tl+r}, v{128+4*tl+r}, v{80+4*tl+r}")
    e("s_xor_b32 s63, s64, s65")
    e(f"s_mul_i32 s63, s63, {PM_MAT}")
    e("v_lshlrev_b32 v44, 3, v3")
    e("v_sub_u32 v45, 25, v44")
    e("s_cmp_eq_u32 s64, 0")
    e("s_cselect_b64 vcc, -1, 0")
    e("v_cndmask_b32 v44, v45, v44, vcc")
    e("v_sub_u32 v45, 32, v2")
    e("s_cmp_eq_u32 s65, 0")
    e("s_cselect_b64 vcc, -1, 0")
    e("v_cndmask_b32 v45, v45, v2, vcc")
    e(f"v_mul_u32_u24 v45, {PM_PITCH}, v45")
    e("v_lshl_add_u32 v44, v44, 2, v45")
    e("v_add_u32 v44, s63, v44")
    e(f"s_cmp_eq_u32 s65, 0")
    e(f"s_mov_b32 s68, {16*PM_PITCH}")
    e(f"s_mov_b32 s69, {-16*PM_PITCH}")
    e("s_cselect_b32 s63, s68, s69")
    e("v_add_u32 v45, s63, v44")
    for tq in range(2):
        for pw in range(4):
            for k in range(8):
                e(f"ds_read_b32 v{64 + 32*tq + 8*pw + k}, v{44+tq} offset:{PMBASE + pw*PM_WAVE + 4*k}")
        e("s_waitcnt lgkmcnt(0)")
        for k in range(8):
            b = 64 + 32 * tq
            e(f"v_add_f32 v{b+k}, v{b+k}, v{b+8+k}")
            e(f"v_add_f32 v{b+16+k}, v{b+16+k}, v{b+24+k}")
            e(f"v_add_f32 v{b+k}, v{b+k}, v{b+16+k}")
    e("s_waitcnt vmcnt(0)")
    for wc in range(2):
        e(f"s_cmp_lg_u32 s64, {wc}")
        e(f"s_cbranch_scc1 KB_FIN_{wc}")
        for tq in range(2):
            for half in range(2):
                tl = half + 2 * tq
                for r in range(4):
                    k8 = 4 * half + r
                    yi = 64 + 32 * tq + (7 - k8 if wc else k8)
                    zr = 128 + 4 * tl + r
                    xr = 144 + 4 * tq + (k8 >> 1)
                    e(f"v_add_f32 v{zr}, v{zr}, v{yi}")
                    if k8 & 1:
                        e(f"v_and_b32 v46, 0xffff0000, v{xr}")
                    else:
                        e(f"v_lshlrev_b32 v46, 16, v{xr}")
                    e(f"v_add_f32 v{zr}, v{zr}, v46")
            for d in range(4):
                tl = (d >> 1) + 2 * tq
                z0 = 128 + 4 * tl + 2 * (d & 1)
                e(f"v_cvt_pk_bf16_f32 v{152+4*tq+d}, v{z0}, v{z0+1}")
        e.label(f"KB_FIN_{wc}")
    e("s_nop 1")
    e(f"buffer_store_dwordx4 v[152:155], v42, {sr(SO)}, 0 offen")
    e(f"buffer_store_dwordx4 v[156:159], v43, {sr(SO)}, 0 offen")
    e.label("KB_END")
    e("s_endpgm")
    return e.text(), 256 + NACC

HEADER = open("parallel_sum__spectral_fnet__dense_activation_relu__prompt.s.ref").read().split("; Override launch")[0]

def main(out):
    ka, ka_v = gen_ka()
    kb, kb_v = gen_kb()
    t = HEADER
    t += f"; @launch kernel=fnet_ka_kernel grid=(256,1,1) block=(256,1,1) lds={KA_LDS}\n"
    t += f"; @launch kernel=fnet_kb_kernel grid=(256,1,1) block=(256,1,1) lds={KB_LDS}\n"
    t += '.amdgcn_target "amdgcn-amd-amdhsa--gfx950"\n.text\n'
    for name, body in (("fnet_ka_kernel", ka), ("fnet_kb_kernel", kb)):
        t += f".globl {name}\n.p2align 8\n.type {name},@function\n" + body
    t += '.section .rodata,"a"\n'
    for name, nv in (("fnet_ka_kernel", ka_v), ("fnet_kb_kernel", kb_v)):
        t += f""".p2align 6
.amdhsa_kernel {name}
  .amdhsa_next_free_vgpr {nv}
  .amdhsa_next_free_sgpr 96
  .amdhsa_accum_offset 256
  .amdhsa_group_segment_fixed_size 0
  .amdhsa_kernarg_size 88
  .amdhsa_user_sgpr_count 2
  .amdhsa_user_sgpr_kernarg_segment_ptr 1
  .amdhsa_system_sgpr_workgroup_id_x 1
.end_amdhsa_kernel
"""
    open(out, "w").write(t)

if __name__ == "__main__":
    main(sys.argv[1] if len(sys.argv) > 1 else "parallel_sum__spectral_fnet__dense_activation_relu__prompt.s")
```

```python
import sys, os, re

S, D, F = 2048, 512, 1792
H_OFF, ABT_OFF, W2T_OFF = 0, 0x800000, 0xA00000
H_BYTES = S * F * 2
ABT_PITCH = 2176
ABT_BYTES = 512 * ABT_PITCH
W2T_BYTES = 512 * F * 2
OOB = 0x40000000
PROF = int(os.environ.get("PROF", "0"))
PROF_OFF = 0x4000000

class Emit:
    def __init__(self):
        self.lines = []
        self.nvm = 0
    def __call__(self, s=""):
        m = re.search(r"offset:(-?\d+)", s)
        if m:
            o = int(m.group(1))
            if s.lstrip().startswith("buffer_"): assert 0 <= o <= 4095, s
            if s.lstrip().startswith("ds_"): assert 0 <= o <= 65535, s
        self.lines.append("    " + s if s and not s.endswith(":") else s)
    def vm(self, s):
        if s.endswith(" lds") and self.lines and " m0," in self.lines[-1]:
            self("s_nop 0")
        self(s)
        self.nvm += 1
        return self.nvm - 1
    def wait_vm(self, idx):
        n = self.nvm - idx - 1
        if n <= 62:
            self(f"s_waitcnt vmcnt({n})")
    def label(self, s):
        self.lines.append(s + ":")
    def text(self):
        return "\n".join(self.lines) + "\n"

def stamp(e, k):
    if PROF:
        e(f"s_memtime s[{80+2*k}:{81+2*k}]")
        e("s_waitcnt lgkmcnt(0)")
def stamps_out(e, kidx, nst, wslo, wshi):
    if not PROF: return
    e(f"s_add_u32 s76, s{wslo}, {PROF_OFF}")
    e(f"s_addc_u32 s77, s{wshi}, 0")
    e("s_and_b32 s77, s77, 0xffff")
    e(f"s_mov_b32 s78, {2*256*4*64}")
    e("s_mov_b32 s79, 0x00020000")
    e(f"s_add_u32 s74, s2, {kidx*256}")
    e("s_lshl_b32 s74, s74, 2")
    e("s_add_u32 s74, s74, s21")
    e("s_lshl_b32 s74, s74, 6")
    e("s_mov_b64 s[70:71], exec")
    e("s_mov_b64 exec, 1")
    e("v_mov_b32 v200, 0")
    for k in range(nst):
        e(f"v_mov_b32 v202, s{80+2*k}")
        e(f"v_mov_b32 v203, s{81+2*k}")
        e(f"buffer_store_dwordx2 v[202:203], v200, s[76:79], s74 offen offset:{8*k}")
    e("s_mov_b64 exec, s[70:71]")

def vr(base, n=4): return f"v[{base}:{base+n-1}]"
def ar(base, n=4): return f"a[{base}:{base+n-1}]"
def sr(base, n=4): return f"s[{base}:{base+n-1}]"

def make_srd(e, dst, lo, hi, nbytes, add=0):
    if add:
        e(f"s_add_u32 s{dst}, s{lo}, {add}")
        e(f"s_addc_u32 s{dst+1}, s{hi}, 0")
    else:
        e(f"s_mov_b32 s{dst}, s{lo}")
        e(f"s_mov_b32 s{dst+1}, s{hi}")
    e(f"s_and_b32 s{dst+1}, s{dst+1}, 0xffff")
    e(f"s_mov_b32 s{dst+2}, {nbytes}")
    e(f"s_mov_b32 s{dst+3}, 0x00020000")

WPBASE = 0
WPPITCH = 1056
STG0 = 32 * WPPITCH
STGSZ = 30720
XOFF, W1OFF = 0, 16384
NSTG = 4
KA_LDS = STG0 + NSTG * STGSZ
TBASE = STG0 + 3 * STGSZ
CSX = STG0

def gen_ka():
    e = Emit()
    e.label("fnet_ka_kernel")
    e("s_cmp_ge_u32 s2, 256")
    e("s_cbranch_scc1 KA_END")
    e("s_load_dwordx2 s[4:5], s[0:1], 0")
    e("s_load_dwordx4 s[8:11], s[0:1], 24")
    e("s_load_dwordx4 s[12:15], s[0:1], 48")
    e("s_load_dwordx2 s[16:17], s[0:1], 80")
    e("s_and_b32 s3, s2, 7")
    e("s_lshr_b32 s18, s2, 3")
    e("s_and_b32 s19, s3, 3")
    e("s_lshl_b32 s19, s19, 2")
    e("s_and_b32 s20, s18, 3")
    e("s_add_u32 s19, s19, s20")
    e("s_lshr_b32 s20, s3, 2")
    e("s_lshl_b32 s20, s20, 3")
    e("s_lshr_b32 s21, s18, 2")
    e("s_add_u32 s20, s20, s21")
    e("v_lshrrev_b32 v1, 6, v0")
    e("v_and_b32 v0, 63, v0")
    e("v_and_b32 v2, 15, v0")
    e("v_readfirstlane_b32 s21, v1")
    e("v_lshrrev_b32 v3, 4, v0")
    e("s_waitcnt lgkmcnt(0)")
    stamp(e, 0)
    SX, SW1, SWPA, SWPB, SW2, SH, SAB, SW2T = 24, 28, 32, 36, 40, 44, 48, 52
    make_srd(e, SX, 4, 5, S * D * 2)
    make_srd(e, SW1, 12, 13, D * F * 2)
    make_srd(e, SW2, 14, 15, F * D * 2)
    make_srd(e, SH, 16, 17, H_BYTES, H_OFF)
    make_srd(e, SAB, 16, 17, ABT_BYTES, ABT_OFF)
    make_srd(e, SW2T, 16, 17, W2T_BYTES, W2T_OFF)
    e("s_cmp_lt_u32 s20, 8")
    e(f"s_cselect_b32 s{SWPB}, s8, s10")
    e(f"s_cselect_b32 s{SWPB+1}, s9, s11")
    e(f"s_and_b32 s{SWPB+1}, s{SWPB+1}, 0xffff")
    e(f"s_mov_b32 s{SWPB+2}, {D*D*2}")
    e(f"s_mov_b32 s{SWPB+3}, 0x00020000")
    e("s_cmp_eq_u32 s21, 0")
    e("s_cselect_b32 s22, 9, 8")
    e("s_cmp_lt_u32 s20, s22")
    e(f"s_cselect_b32 s{SWPA}, s8, s10")
    e(f"s_cselect_b32 s{SWPA+1}, s9, s11")
    e(f"s_and_b32 s{SWPA+1}, s{SWPA+1}, 0xffff")
    e(f"s_mov_b32 s{SWPA+2}, {D*D*2}")
    e(f"s_mov_b32 s{SWPA+3}, 0x00020000")
    e("s_mov_b32 s61, 3584")
    e("v_lshrrev_b32 v26, 2, v0")
    e("v_and_b32 v27, 3, v0")
    e("v_lshlrev_b32 v27, 4, v27")
    e("v_lshl_add_u32 v26, v26, 10, v27")
    e("s_mul_i32 s64, s20, 112")
    e("s_lshl_b32 s65, s21, 4")
    e("s_add_u32 s64, s64, s65")
    e("s_lshl_b32 s64, s64, 10")
    e("s_lshl_b32 s65, s19, 6")
    e("s_add_u32 s64, s64, s65")
    e("s_lshl_b32 s65, s21, 10")
    for n in range(2):
        e(f"s_add_u32 m0, s65, {TBASE + n*4096}")
        e(f"s_add_u32 s66, s64, {n*64*1024}")
        w2op = e.vm(f"buffer_load_dwordx4 v26, {sr(SW2)}, s66 offen lds")
    e("s_lshl_b32 s23, s20, 5")
    e("s_lshl_b32 s56, s21, 3")
    e("s_add_u32 s23, s23, s56")
    e("s_lshl_b32 s23, s23, 10")
    e("v_lshlrev_b32 v10, 4, v0")
    e(f"s_mul_i32 s57, s56, {WPPITCH}")
    e(f"s_add_u32 s57, s57, {WPBASE}")
    for rr in range(8):
        e(f"s_add_u32 m0, s57, {rr*WPPITCH}")
        e(f"s_add_u32 s58, s23, {rr*1024}")
        e.vm(f"buffer_load_dwordx4 v10, {sr(SWPA if rr==0 else SWPB)}, s58 offen lds")
    e("s_lshl_b32 s22, s19, 6")
    e("s_lshl_b32 s23, s21, 4")
    e("s_add_u32 s22, s22, s23")
    XV = 12
    e("v_lshrrev_b32 v20, 3, v0")
    e("v_lshrrev_b32 v21, 4, v0")
    e("v_and_b32 v22, 7, v0")
    e("v_mov_b32 v6, 0x400")
    for h in range(2):
        e(f"v_add_u32 v23, {8*h}, v20")
        e("v_add_u32 v23, s22, v23")
        e(f"v_xor_b32 v24, {4*h}, v21")
        e("v_xor_b32 v24, v22, v24")
        e("v_lshlrev_b32 v24, 4, v24")
        e(f"v_lshl_add_u32 v{XV+h}, v23, 10, v24")
        e("v_sub_u32 v25, 0x800, v23")
        e("v_cmp_eq_u32 vcc, 0, v23")
        e("s_nop 1")
        e("v_cndmask_b32 v25, v25, v6, vcc")
        e(f"v_lshl_add_u32 v{XV+2+h}, v25, 10, v24")
    e("v_add_u32 v4, s22, v2")
    e("v_sub_u32 v5, 0x800, v4")
    e("v_cmp_eq_u32 vcc, 0, v4")
    e("s_nop 1")
    e("v_cndmask_b32 v5, v5, v6, vcc")
    W1V = 16
    e("s_mul_i32 s59, s20, 224")
    e("s_mov_b32 s60, 4682")
    e("s_and_b32 s62, s21, 1")
    e("s_add_u32 s62, s62, 12")
    for n in range(4):
        z, p, cc, k, t1, t2 = 28, 29, 30, 31, 32, 33
        if n < 3:
            e(f"s_add_u32 s63, s21, {4*n}")
        else:
            e("s_mov_b32 s63, s62")
        e("s_lshl_b32 s63, s63, 6")
        e(f"v_add_u32 v{z}, s63, v0")
        e(f"v_mul_lo_u32 v{p}, v{z}, s60")
        e(f"v_lshrrev_b32 v{p}, 16, v{p}")
        e(f"v_mul_u32_u24 v{cc}, 14, v{p}")
        e(f"v_sub_u32 v{cc}, v{z}, v{cc}")
        e(f"v_and_b32 v{k}, 0x33, v{p}")
        e(f"v_and_b32 v{t1}, 4, v{p}")
        e(f"v_lshlrev_b32 v{t1}, 1, v{t1}")
        e(f"v_and_b32 v{t2}, 8, v{p}")
        e(f"v_lshrrev_b32 v{t2}, 1, v{t2}")
        e(f"v_or3_b32 v{k}, v{k}, v{t1}, v{t2}")
        e(f"v_mul_lo_u32 v{k}, v{k}, s61")
        e(f"v_lshl_add_u32 v{k}, v{cc}, 4, v{k}")
        e(f"v_add_u32 v{W1V+n}, s59, v{k}")
    e("s_cmp_lt_u32 s21, 2")
    e("s_cselect_b64 s[68:69], -1, 1")
    e("s_lshl_b32 s72, s21, 12")
    e("s_lshl_b32 s73, s21, 10")
    e("s_lshl_b32 s67, s62, 10")
    stage_last = {}
    def issue_stage(st):
        buf = STG0 + (st % NSTG) * STGSZ
        e(f"s_mov_b32 s63, {128*st}")
        for t in range(2):
            for h in range(2):
                e(f"s_add_u32 m0, s72, {buf + XOFF + (2*t+h)*1024}")
                e.vm(f"buffer_load_dwordx4 v{XV+2*t+h}, {sr(SX)}, s63 offen lds")
        e(f"s_mov_b32 s63, {st*64*3584}")
        for n in range(4):
            if n < 3:
                e(f"s_add_u32 m0, s73, {buf + W1OFF + n*4096}")
            else:
                e(f"s_add_u32 m0, s67, {buf + W1OFF}")
                e("s_mov_b64 exec, s[68:69]")
            stage_last[st] = e.vm(f"buffer_load_dwordx4 v{W1V+n}, {sr(SW1)}, s63 offen lds")
        e("s_mov_b64 exec, -1")
    for st in range(3):
        issue_stage(st)
    stamp(e, 1)
    ONES = 92
    for r in range(4):
        e(f"v_mov_b32 v{ONES+r}, 0x3f803f80")
    SUM, SQ = 30, 32
    for t in range(2):
        e(f"v_mov_b32 v{SUM+t}, 0")
        e(f"v_mov_b32 v{SQ+t}, 0")
    e("v_lshrrev_b32 v44, 1, v3")
    e("v_lshlrev_b32 v44, 4, v44")
    e("v_and_b32 v45, 1, v3")
    e("v_lshl_add_u32 v44, v45, 2, v44")
    e("v_lshrrev_b32 v45, 2, v2")
    e("v_add_u32 v44, v44, v45")
    e("v_mul_u32_u24 v44, 224, v44")
    e("v_and_b32 v45, 3, v0")
    e("v_lshl_add_u32 v44, v45, 3, v44")
    e("v_lshrrev_b32 v45, 1, v2")
    e("v_xor_b32 v45, v45, v3")
    e("v_lshlrev_b32 v45, 4, v45")
    e("v_lshl_add_u32 v45, v2, 7, v45")
    e("v_add_u32 v45, s72, v45")
    e("v_xor_b32 v34, 64, v45")
    e(f"v_mul_u32_u24 v46, {WPPITCH}, v2")
    e("v_lshl_add_u32 v46, v3, 4, v46")
    e(f"v_add_u32 v46, {WPBASE}, v46")
    NACC = 108
    for a in range(NACC):
        e(f"v_accvgpr_write_b32 a{a}, 0")
    def acc(q, t): return (2 * q + t) * 4
    def csa(q): return 72 + 4 * q
    e("v_and_b32 v47, 1, v3")
    e("v_lshlrev_b32 v47, 3, v47")
    e("v_lshrrev_b32 v48, 2, v2")
    e("v_add_u32 v47, v47, v48")
    e("v_lshlrev_b32 v47, 6, v47")
    e("v_lshrrev_b32 v48, 1, v3")
    e("v_lshl_add_u32 v47, v48, 5, v47")
    e("v_and_b32 v48, 3, v0")
    e("v_lshl_add_u32 v47, v48, 3, v47")
    e(f"s_add_u32 s65, s73, {TBASE & 0xffff}")
    e("v_add_u32 v47, s65, v47")
    e(f"v_add_u32 v47, {TBASE & ~0xffff}, v47")
    e.wait_vm(w2op)
    W2R = 50
    for n in range(2):
        for h in range(2):
            e(f"ds_read_b64_tr_b16 v[{W2R+4*n+2*h}:{W2R+1+4*n+2*h}], v47 offset:{4096*n + 256*h}")
    e("s_waitcnt lgkmcnt(0)")
    WF = 96; NSL = 8
    XFR = 128
    TRA, XA0, XA1 = 58, 59, 60
    for st in range(8):
        buf = STG0 + (st % NSTG) * STGSZ
        e.wait_vm(stage_last[st])
        e("s_barrier")
        if st == 0: stamp(e, 2)
        if st + 3 < 8:
            issue_stage(st + 3)
        e(f"v_add_u32 v{TRA}, {buf + W1OFF}, v44")
        e(f"v_add_u32 v{XA0}, {buf + XOFF}, v45")
        e(f"v_add_u32 v{XA1}, {buf + XOFF}, v34")
        seq = []
        for k2 in range(2):
            seq.append(("x", k2, 0)); seq.append(("x", k2, 1))
            for q in range(9):
                seq.append(("w", k2, q))
        def xreg(k2, t): return XFR + 8 * ((2 * st + k2) % 4) + 4 * t
        wslot = {}
        cnt = [0]
        def issue(it):
            kind, k2, q = it
            if kind == "x":
                e(f"ds_read_b128 {vr(xreg(k2,q))}, v{XA0 if k2==0 else XA1} offset:{2048*q}")
                return 1
            sl = WF + 4 * (cnt[0] % NSL); cnt[0] += 1
            wslot[(k2, q)] = sl
            if q < 7:
                off = 7168 * k2 + 32 * q
                e(f"ds_read_b64_tr_b16 v[{sl}:{sl+1}], v{TRA} offset:{off}")
                e(f"ds_read_b64_tr_b16 v[{sl+2}:{sl+3}], v{TRA} offset:{off+1792}")
                return 2
            e(f"ds_read_b128 {vr(sl)}, v46 offset:{16*WPPITCH*(q-7) + 64*(2*st+k2)}")
            return 1
        LA = 6
        nrd = [1 if (it[0] == "x" or it[2] >= 7) else 2 for it in seq]
        for n in range(min(LA, len(seq))):
            issue(seq[n])
        for n, it in enumerate(seq):
            if n + LA < len(seq):
                issue(seq[n + LA])
            out = sum(nrd[n + 1: min(len(seq), n + LA + 1)])
            kind, k2, q = it
            if kind == "x":
                continue
            e(f"s_waitcnt lgkmcnt({min(out,15)})")
            sl = wslot[(k2, q)]
            for t in range(2):
                if q < 7:
                    e(f"v_mfma_f32_16x16x32_bf16 {ar(acc(q,t))}, {vr(sl)}, {vr(xreg(k2,t))}, {ar(acc(q,t))}")
                else:
                    e(f"v_mfma_f32_16x16x32_bf16 {ar(acc(q,t))}, {vr(xreg(k2,t))}, {vr(sl)}, {ar(acc(q,t))}")
            ks = 2 * st + k2
            e(f"s_cmp_lg_u32 s21, {ks%4}")
            e(f"s_cbranch_scc1 KA_NOCS_{ks}_{q}")
            if q < 7:
                e(f"v_mfma_f32_16x16x32_bf16 {ar(csa(q))}, {vr(sl)}, {vr(ONES)}, {ar(csa(q))}")
            else:
                e(f"v_mfma_f32_16x16x32_bf16 {ar(csa(q))}, {vr(ONES)}, {vr(sl)}, {ar(csa(q))}")
            e.label(f"KA_NOCS_{ks}_{q}")
            if q == 0:
                for r in range(4):
                    for t in range(2):
                        e(f"v_dot2c_f32_bf16 v{SUM+t}, v{xreg(k2,t)+r}, v{ONES}")
                        e(f"v_dot2c_f32_bf16 v{SQ+t}, v{xreg(k2,t)+r}, v{xreg(k2,t)+r}")
    stamp(e, 3)
    e("v_xor_b32 v34, 16, v0")
    e("v_lshlrev_b32 v34, 2, v34")
    e("v_xor_b32 v35, 32, v0")
    e("v_lshlrev_b32 v35, 2, v35")
    for pv in (34, 35):
        for r in range(4):
            e(f"ds_bpermute_b32 v{36+r}, v{pv}, v{SUM+r}")
        e("s_waitcnt lgkmcnt(0)")
        for r in range(4):
            e(f"v_add_f32 v{SUM+r}, v{SUM+r}, v{36+r}")
    MB, RR = 40, 42
    e("s_mov_b32 s67, 0x3b000000")
    e("s_mov_b32 s68, 0x3727c5ac")
    for t in range(2):
        e(f"v_mul_f32 v{36+t}, s67, v{SUM+t}")
        e(f"v_mul_f32 v{38+t}, s67, v{SQ+t}")
        e(f"v_fma_f32 v{38+t}, -v{36+t}, v{36+t}, v{38+t}")
        e(f"v_max_f32 v{38+t}, 0, v{38+t}")
        e(f"v_cvt_pk_bf16_f32 v{MB+t}, v{36+t}, v{36+t}")
        e(f"v_lshlrev_b32 v{MB+t}, 16, v{MB+t}")
        e(f"v_cvt_pk_bf16_f32 v{38+t}, v{38+t}, v{38+t}")
        e(f"v_lshlrev_b32 v{38+t}, 16, v{38+t}")
        e(f"v_add_f32 v{38+t}, s68, v{38+t}")
        e(f"v_cvt_pk_bf16_f32 v{38+t}, v{38+t}, v{38+t}")
        e(f"v_lshlrev_b32 v{38+t}, 16, v{38+t}")
        e(f"v_sqrt_f32 v{38+t}, v{38+t}")
        e("s_nop 0")
        e(f"v_cvt_pk_bf16_f32 v{38+t}, v{38+t}, v{38+t}")
        e(f"v_lshlrev_b32 v{38+t}, 16, v{38+t}")
        e(f"v_rcp_f32 v{RR+t}, v{38+t}")
        e("s_nop 0")
    e("v_lshrrev_b32 v48, 1, v3")
    e("v_lshl_add_u32 v48, v48, 4, v2")
    e("s_lshl_b32 s65, s19, 5")
    e("v_add_u32 v48, s65, v48")
    e("v_mul_lo_u32 v48, v48, s61")
    e("v_and_b32 v49, 1, v3")
    e("v_lshl_add_u32 v48, v49, 4, v48")
    e("s_mul_i32 s65, s20, 224")
    e("s_lshl_b32 s66, s21, 5")
    e("s_add_u32 s65, s65, s66")
    e("v_add_u32 v48, s65, v48")
    e(f"buffer_store_dwordx4 v[{W2R}:{W2R+3}], v48, {sr(SW2T)}, 0 offen")
    e("s_cmp_eq_u32 s21, 3")
    e("s_cbranch_scc1 KA_NOT2")
    e(f"buffer_store_dwordx4 v[{W2R+4}:{W2R+7}], v48, {sr(SW2T)}, 0 offen offset:128")
    e.label("KA_NOT2")
    e("s_barrier")
    e("v_lshlrev_b32 v47, 4, v0")
    e("s_mul_i32 s65, s21, 9216")
    e(f"s_add_u32 s65, s65, {CSX}")
    e("v_add_u32 v48, s65, v47")
    e(f"v_add_u32 v47, {CSX}, v47")
    CSV = 128
    for q in range(9):
        for r in range(4):
            e(f"v_accvgpr_read_b32 v{CSV+4*q+r}, a{csa(q)+r}")
    for q in range(9):
        e(f"ds_write_b128 v48, {vr(CSV+4*q)} offset:{1024*q}")
    e("s_waitcnt lgkmcnt(0)")
    e("s_barrier")
    TMP = 168
    for q in range(9):
        for wv in range(4):
            e(f"ds_read_b128 {vr(TMP+4*wv)}, v47 offset:{9216*wv + 1024*q}")
        e("s_waitcnt lgkmcnt(0)")
        for r in range(4):
            e(f"v_add_f32 v{TMP+r}, v{TMP+r}, v{TMP+4+r}")
            e(f"v_add_f32 v{TMP+8+r}, v{TMP+8+r}, v{TMP+12+r}")
            e(f"v_add_f32 v{CSV+4*q+r}, v{TMP+r}, v{TMP+8+r}")
    stamp(e, 4)
    e("s_mul_i32 s65, s20, 224")
    for t in range(2):
        e(f"v_mul_lo_u32 v{60+t}, v{4+t}, s61")
        e(f"v_lshl_add_u32 v{60+t}, v3, 3, v{60+t}")
        e(f"v_add_u32 v{60+t}, s65, v{60+t}")
    for q in range(7):
        for t in range(2):
            T0 = 168 + 8 * t
            for r in range(4):
                e(f"v_accvgpr_read_b32 v{T0+r}, a{acc(q,t)+r}")
            for r in range(4):
                e(f"v_fma_f32 v{T0+r}, -v{MB+t}, v{CSV+4*q+r}, v{T0+r}")
            for r in range(4):
                e(f"v_mul_f32 v{T0+r}, v{RR+t}, v{T0+r}")
            for r in range(4):
                e(f"v_max_f32 v{T0+r}, 0, v{T0+r}")
            e(f"v_cvt_pk_bf16_f32 v{T0+4}, v{T0}, v{T0+1}")
            e(f"v_cvt_pk_bf16_f32 v{T0+5}, v{T0+2}, v{T0+3}")
            e(f"buffer_store_dwordx2 v[{T0+4}:{T0+5}], v{60+t}, {sr(SH)}, 0 offen offset:{32*q}")
    MT, RT = 100, 108
    e("v_lshlrev_b32 v80, 4, v3")
    for r in range(4):
        e(f"v_add_u32 v{81+r}, {4*r}, v80")
    for t in range(2):
        for r in range(4):
            e(f"ds_bpermute_b32 v{MT+4*t+r}, v{81+r}, v{MB+t}")
            e(f"ds_bpermute_b32 v{RT+4*t+r}, v{81+r}, v{RR+t}")
    e("v_mov_b32 v62, 0")
    e("v_mov_b32 v63, 1.0")
    e("v_mov_b32 v68, -1.0")
    e("s_lshl_b32 s65, s20, 5")
    e("v_add_u32 v65, s65, v2")
    e(f"s_mov_b32 s66, {ABT_PITCH}")
    e("v_mul_lo_u32 v66, v65, s66")
    e("v_add_u32 v67, 0x800, v66")
    e("v_lshl_add_u32 v85, v3, 2, s22")
    e("v_lshl_add_u32 v66, v85, 1, v66")
    e("v_cmp_ne_u32 vcc, 0, v85")
    e("s_nop 1")
    e("v_cndmask_b32 v86, v62, v63, vcc")
    e(f"s_mov_b32 s72, {16*ABT_PITCH}")
    e("s_waitcnt lgkmcnt(0)")
    for q in range(7, 9):
        A0, A1, SG = 168, 172, 176
        e(f"v_add_u32 v{SG}, {16*(q-7)}, v65")
        e(f"v_cmp_gt_u32 vcc, 0x101, v{SG}")
        for r in range(4):
            e(f"v_accvgpr_read_b32 v{A0+r}, a{acc(q,0)+r}")
            e(f"v_accvgpr_read_b32 v{A1+r}, a{acc(q,1)+r}")
        e(f"v_cndmask_b32 v{SG}, v68, v63, vcc")
        e(f"v_mul_f32 v{SG+1}, v{SG}, v86")
        for r in range(4):
            e(f"v_fma_f32 v{A0+r}, -v{MT+r}, v{CSV+4*q}, v{A0+r}")
            e(f"v_fma_f32 v{A1+r}, -v{MT+4+r}, v{CSV+4*q}, v{A1+r}")
        for r in range(4):
            e(f"v_mul_f32 v{A0+r}, v{RT+r}, v{A0+r}")
            e(f"v_mul_f32 v{A1+r}, v{RT+4+r}, v{A1+r}")
        for r in range(4):
            e(f"v_fma_f32 v{A0+r}, v{SG+(1 if r==0 else 0)}, v{A1+r}, v{A0+r}")
        e(f"v_cvt_pk_bf16_f32 v{A0+10}, v{A0}, v{A0+1}")
        e(f"v_cvt_pk_bf16_f32 v{A0+11}, v{A0+2}, v{A0+3}")
        so = "0" if q == 7 else "s72"
        e(f"buffer_store_dwordx2 v[{A0+10}:{A0+11}], v66, {sr(SAB)}, {so} offen")
        e("s_cmp_lg_u32 s22, 0")
        e(f"s_cbranch_scc1 KA_S0_{q}")
        e(f"v_cvt_pk_bf16_f32 v{A0+12}, v{A1}, v62")
        e("s_mov_b64 s[70:71], exec")
        e("s_mov_b64 exec, 0xffff")
        e(f"buffer_store_dword v{A0+12}, v67, {sr(SAB)}, {so} offen")
        e("s_mov_b64 exec, s[70:71]")
        e.label(f"KA_S0_{q}")
    if PROF:
        e("s_waitcnt vmcnt(0)")
    stamp(e, 5)
    stamps_out(e, 0, 6, 16, 17)
    e("s_cmp_lg_u32 s19, 0")
    e("s_cbranch_scc1 KA_END")
    e("s_cmp_lg_u32 s21, 1")
    e("s_cbranch_scc1 KA_END")
    e("s_lshl_b32 s65, s20, 5")
    e("v_add_u32 v65, s65, v0")
    e("v_mul_lo_u32 v66, v65, s66")
    e("v_add_u32 v66, 2052, v66")
    e("v_cmp_gt_u32 vcc, 32, v0")
    e("s_and_saveexec_b64 s[70:71], vcc")
    for d in range(15):
        e(f"buffer_store_dword v62, v66, {sr(SAB)}, 0 offen offset:{4*d}")
    e("s_mov_b64 exec, s[70:71]")
    e.label("KA_END")
    e("s_endpgm")
    return e.text(), 256 + NACC

PM_PITCH = 52 * 4
PM_MAT = 48 * PM_PITCH
PM_WAVE = 2 * PM_MAT
PMBASE = 0
ZXBASE = 4 * PM_WAVE
RINGW = 32768
KB_LDS = max(ZXBASE + 4 * 3 * 4096, 4 * RINGW)

def gen_kb():
    e = Emit()
    e.label("fnet_kb_kernel")
    e("s_cmp_ge_u32 s2, 256")
    e("s_cbranch_scc1 KB_END")
    e("s_load_dwordx2 s[4:5], s[0:1], 0")
    e("s_load_dwordx4 s[8:11], s[0:1], 8")
    e("s_load_dwordx2 s[12:13], s[0:1], 64")
    e("s_load_dwordx2 s[16:17], s[0:1], 80")
    e("s_and_b32 s3, s2, 7")
    e("s_lshr_b32 s18, s2, 3")
    e("s_and_b32 s19, s3, 3")
    e("s_lshl_b32 s19, s19, 3")
    e("s_and_b32 s20, s18, 7")
    e("s_add_u32 s19, s19, s20")
    e("s_lshr_b32 s20, s3, 2")
    e("s_lshl_b32 s20, s20, 2")
    e("s_lshr_b32 s21, s18, 3")
    e("s_add_u32 s20, s20, s21")
    e("v_lshrrev_b32 v1, 6, v0")
    e("v_and_b32 v0, 63, v0")
    e("v_and_b32 v2, 15, v0")
    e("v_readfirstlane_b32 s21, v1")
    e("v_lshrrev_b32 v3, 4, v0")
    e("s_waitcnt lgkmcnt(0)")
    stamp(e, 0)
    SX, SO, SH, SW2T, SAB, SWR, SWI = 24, 28, 32, 36, 40, 44, 48
    make_srd(e, SX, 4, 5, S * D * 2)
    make_srd(e, SO, 12, 13, S * D * 2)
    make_srd(e, SH, 16, 17, H_BYTES, H_OFF)
    make_srd(e, SW2T, 16, 17, W2T_BYTES, W2T_OFF)
    make_srd(e, SAB, 16, 17, ABT_BYTES, ABT_OFF)
    make_srd(e, SWR, 8, 9, S * S * 2)
    make_srd(e, SWI, 10, 11, S * S * 2)
    e("s_mov_b32 s61, 3584")
    e(f"s_mov_b32 s62, {ABT_PITCH}")
    e("s_lshl_b32 s52, s19, 5")
    e("s_lshl_b32 s53, s20, 5")
    e("s_sub_u32 s54, 2016, s52")
    e("s_sub_u32 s55, 480, s53")
    e("s_mul_i32 s56, s21, 896")
    e("s_lshl_b32 s57, s21, 9")
    e("v_lshlrev_b32 v4, 4, v3")
    e(f"v_mov_b32 v8, {OOB}")
    e("s_cmp_eq_u32 s21, 3")
    e("s_cselect_b32 s58, 33, 0")
    SETR = [64, 160]
    XR = SETR[1]
    for qa in range(3):
        e(f"v_add_u32 v7, {16*qa}, v2")
        e("v_add_u32 v9, s53, v7")
        e("v_mul_lo_u32 v36, v9, s62")
        e("v_add_u32 v38, 0x800, v36")
        e("v_add_u32 v38, v38, v4")
        e("v_cmp_gt_u32 vcc, s58, v7")
        e("s_nop 1")
        e(f"v_cndmask_b32 v{30+qa}, v8, v38, vcc")
        e("v_add_u32 v9, s52, v7")
        e("v_lshlrev_b32 v36, 12, v9")
        e("v_add_u32 v38, 0x800, v36")
        e("v_add_u32 v38, v38, v4")
        e(f"v_cndmask_b32 v{33+qa}, v8, v38, vcc")
    xops = []
    for qa in range(3):
        xops.append(e.vm(f"buffer_load_dwordx4 {vr(XR+4*qa)}, v{30+qa}, {sr(SAB)}, 0 offen"))
    for qa in range(3):
        xops.append(e.vm(f"buffer_load_dwordx4 {vr(XR+12+4*qa)}, v{33+qa}, {sr(SWR)}, 0 offen"))
    e("v_lshrrev_b32 v20, 3, v0")
    e("v_lshrrev_b32 v21, 4, v0")
    e("v_and_b32 v22, 7, v0")
    PA, PH, PW, PB, PBR = 10, 14, 16, 18, 36
    for pi in range(4):
        e("v_and_b32 v23, 1, v21")
        e(f"v_or_b32 v23, {pi<<1}, v23")
        e("v_xor_b32 v23, v22, v23")
        e(f"v_add_u32 v24, {8*pi}, v20")
        e("v_mul_lo_u32 v24, v24, s61")
        e(f"v_lshl_add_u32 v{PA+pi}, v23, 4, v24")
    for h in range(2):
        e(f"v_xor_b32 v23, {4*h}, v21")
        e("v_xor_b32 v23, v22, v23")
        e("v_lshlrev_b32 v23, 4, v23")
        e(f"v_add_u32 v24, {8*h}, v20")
        e("v_mul_lo_u32 v25, v24, s61")
        e(f"v_add_u32 v{PH+h}, v25, v23")
        e(f"v_lshl_add_u32 v{PW+h}, v24, 12, v23")
        e("v_mul_lo_u32 v25, v24, s62")
        e(f"v_add_u32 v{PB+h}, v25, v23")
        e("v_sub_u32 v24, 15, v24")
        e("v_mul_lo_u32 v25, v24, s62")
        e(f"v_add_u32 v{PBR+h}, v25, v23")
    e("s_mul_i32 s64, s53, s61"); e("s_add_u32 s64, s64, s56")
    e("s_mul_i32 s65, s55, s61"); e("s_add_u32 s65, s65, s56")
    e("s_mul_i32 s66, s52, s61"); e("s_add_u32 s66, s66, s56")
    e(f"s_add_u32 s67, s66, {16*3584}")
    e("s_mul_i32 s68, s54, s61"); e("s_add_u32 s68, s68, s56")
    e(f"s_add_u32 s69, s68, {16*3584}")
    e("s_lshl_b32 s70, s52, 12"); e("s_add_u32 s70, s70, s57")
    e(f"s_add_u32 s71, s70, {16*4096}")
    e("s_mul_i32 s72, s53, s62"); e("s_add_u32 s72, s72, s57")
    e(f"s_add_u32 s73, s72, {16*ABT_PITCH}")
    e("s_sub_u32 s74, 497, s53"); e("s_mul_i32 s74, s74, s62"); e("s_add_u32 s74, s74, s57")
    e(f"s_sub_u32 s75, s74, {16*ABT_PITCH}")
    e("v_add_u32 v23, s57, v4")
    e("s_add_u32 s59, s53, 32")
    e("s_mul_i32 s60, s59, s62")
    e("v_add_u32 v26, s60, v23")
    e("s_sub_u32 s60, 512, s59")
    e("s_mul_i32 s60, s60, s62")
    e("s_cmp_eq_u32 s59, 256")
    e(f"s_cselect_b32 s60, {OOB}, s60")
    e("v_add_u32 v27, s60, v23")
    e("s_add_u32 s59, s52, 32")
    e("s_lshl_b32 s59, s59, 12")
    e("v_add_u32 v28, s59, v23")
    e("s_lshl_b32 s63, s21, 15")
    RS0, RS1, RA0, RA1 = 40, 41, 42, 43
    e("v_lshrrev_b32 v23, 1, v2")
    e("v_xor_b32 v23, v23, v3")
    e("v_lshlrev_b32 v23, 4, v23")
    e("v_lshl_add_u32 v23, v2, 7, v23")
    e(f"v_add_u32 v{RS0}, s63, v23")
    e(f"v_xor_b32 v{RS1}, 64, v{RS0}")
    e("v_lshrrev_b32 v23, 2, v2")
    e("v_and_b32 v24, 3, v2")
    e("v_lshl_add_u32 v25, v23, 3, v24")
    e("v_lshrrev_b32 v24, 1, v24")
    e("v_lshl_add_u32 v24, v23, 1, v24")
    e("v_xor_b32 v24, v24, v3")
    e("v_lshlrev_b32 v24, 4, v24")
    e("v_lshl_add_u32 v24, v25, 7, v24")
    e(f"v_add_u32 v{RA0}, s63, v24")
    e(f"v_xor_b32 v{RA1}, 64, v{RA0}")
    NACC = 136
    def zacc(q, tq): return (4 * q + tq) * 4
    def cacc(qa, qb): return 64 + (3 * qa + qb) * 4
    def sacc(qa, qb): return 100 + (3 * qa + qb) * 4
    stages = [("D", k) for k in range(4)] + [("Z", k) for k in range(7)]
    def groups_of(si):
        kind, k = stages[si]
        R = SETR[si % 2]
        gl = []
        if kind == "Z":
            for b in range(2):
                pcs = [(SW2T, PA + pi, 64 + b) for pi in range(4)]
                rds = []
                for half in range(2):
                    for k2 in range(2):
                        rds.append((RA0 if k2 == 0 else RA1, 512 * half, R + 8 * (2 * b + half) + 4 * k2))
                gl.append((pcs, rds))
            for tq in range(4):
                pcs = [(SH, PH + h, 66 + tq) for h in range(2)]
                rds = [(RS0, 0, R + 32 + 8 * tq), (RS1, 0, R + 32 + 8 * tq + 4)]
                gl.append((pcs, rds))
        else:
            specs = [(SAB, PB, 72), (SAB, PB, 73), (SWR, PW, 70), (SWR, PW, 71), (SAB, PBR, 74), (SAB, PBR, 75), (SWI, PW, 70), (SWI, PW, 71)]
            for gi, (srd, pv, sb) in enumerate(specs):
                pcs = [(srd, pv + h, sb) for h in range(2)]
                rds = [(RS0, 0, R + 8 * gi), (RS1, 0, R + 8 * gi + 4)]
                gl.append((pcs, rds))
        return gl
    allg = []
    pend = []
    slot = 0
    for si in range(len(stages)):
        for gi, (pcs, rds) in enumerate(groups_of(si)):
            allg.append((si, gi, pcs, rds, slot % 32)); slot += len(pcs); pend.append(slot)
    dma_last = {}
    def issue_group(gidx):
        si, gi, pcs, rds, s0 = allg[gidx]
        kind, k = stages[si]
        for pn, (srd, pv, sb) in enumerate(pcs):
            e(f"s_add_u32 m0, s63, {(s0+pn)*1024}")
            if pn == 0:
                e(f"s_add_u32 s76, s{sb}, {128*k}")
            dma_last[gidx] = e.vm(f"buffer_load_dwordx4 v{pv}, {sr(srd)}, s76 offen lds")
    direct_last = {}
    def issue_direct(si):
        kind, k = stages[si]
        if kind != "D": return
        R = SETR[si % 2] + 64
        for mi, (srd, vo) in enumerate([(SAB, 26), (SWR, 28), (SAB, 27), (SWI, 28)]):
            for k2 in range(2):
                direct_last[si] = e.vm(f"buffer_load_dwordx4 {vr(R+8*mi+4*k2)}, v{vo}, {sr(srd)}, 0 offen offset:{128*k+64*k2}")
    def mfmas(si):
        if si < 0:
            return [f"v_mfma_f32_16x16x32_bf16 {ar(cacc(qa,qb))}, {vr(XR+4*qa)}, {vr(XR+12+4*qb)}, {ar(cacc(qa,qb))}" for qa in range(3) for qb in range(3)], []
        kind, k = stages[si]
        R = SETR[si % 2]
        early, late = [], []
        if kind == "Z":
            for k2 in range(2):
                for q in range(4):
                    for tq in range(4):
                        early.append(f"v_mfma_f32_16x16x32_bf16 {ar(zacc(q,tq))}, {vr(R+8*q+4*k2)}, {vr(R+32+8*tq+4*k2)}, {ar(zacc(q,tq))}")
        else:
            def areg(mat, q, k2):
                return (R + 32 * mat + 8 * q + 4 * k2) if q < 2 else (R + 64 + 16 * mat + 4 * k2)
            def breg(mat, q, k2):
                return (R + 32 * mat + 16 + 8 * q + 4 * k2) if q < 2 else (R + 64 + 16 * mat + 8 + 4 * k2)
            for k2 in range(2):
                for mat in range(2):
                    fa = cacc if mat == 0 else sacc
                    for qa in range(3):
                        for qb in range(3):
                            s = f"v_mfma_f32_16x16x32_bf16 {ar(fa(qa,qb))}, {vr(areg(mat,qa,k2))}, {vr(breg(mat,qb,k2))}, {ar(fa(qa,qb))}"
                            (late if (qa == 2 or qb == 2) else early).append(s)
        return early, late
    gstart = {}
    for gidx, g in enumerate(allg):
        gstart.setdefault(g[0], gidx)
    nissued = 0
    pieces_issued = 0
    while nissued < len(allg) and pieces_issued + len(allg[nissued][2]) <= 32:
        issue_group(nissued); pieces_issued += len(allg[nissued][2]); nissued += 1
    issue_direct(0)
    for a in range(NACC):
        e(f"v_accvgpr_write_b32 a{a}, 0")
    stamp(e, 1)
    freed_q = []
    for si in range(len(stages) + 1):
        early, late = mfmas(si - 1)
        if si == 0:
            e.wait_vm(xops[-1])
        if si < len(stages):
            gids = [g for g in range(len(allg)) if allg[g][0] == si]
            per = -(-len(early) // len(gids))
            for n, g in enumerate(gids):
                _, _, pcs, rds, s0 = allg[g]
                e.wait_vm(dma_last[g])
                for (areg_, off, dst) in rds:
                    e(f"ds_read_b128 {vr(dst)}, v{areg_} offset:{s0*1024 + off}")
                for m in early[n*per:(n+1)*per]:
                    e(m)
                if n > 0:
                    freed = pend[g - 1]
                    if nissued < len(allg) and pend[nissued] <= freed + 32:
                        e(f"s_waitcnt lgkmcnt({len(rds)})")
                        while nissued < len(allg) and pend[nissued] <= freed + 32:
                            issue_group(nissued); nissued += 1
            e("s_waitcnt lgkmcnt(0)")
            freed = pend[gids[-1]]
            while nissued < len(allg) and pend[nissued] <= freed + 32:
                issue_group(nissued); nissued += 1
            if late:
                e.wait_vm(direct_last[si - 1])
                for m in late: e(m)
            if si + 1 < len(stages):
                issue_direct(si + 1)
        else:
            for m in early: e(m)
            if late:
                e.wait_vm(direct_last[si - 1])
                for m in late: e(m)
        if si == 4: stamp(e, 2)
    stamp(e, 3)
    e("s_barrier")
    e("v_lshlrev_b32 v4, 4, v3")
    e(f"v_mul_u32_u24 v40, {PM_PITCH}, v2")
    e("v_lshl_add_u32 v40, v3, 4, v40")
    e(f"s_mul_i32 s63, s21, {PM_WAVE}")
    e("v_add_u32 v40, s63, v40")
    e("s_and_b32 s59, s20, 7")
    e("s_cmp_eq_u32 s59, 0")
    e("s_cselect_b64 s[58:59], 0xffff, 0")
    e("v_mov_b32 v39, 0")
    for qa in range(3):
        for qb in range(3):
            T0 = 64 + 12 * ((3 * qa + qb) % 4)
            for r in range(4):
                e(f"v_accvgpr_read_b32 v{T0+r}, a{cacc(qa,qb)+r}")
                e(f"v_accvgpr_read_b32 v{T0+4+r}, a{sacc(qa,qb)+r}")
            if qa == 0:
                e(f"v_cndmask_b32 v{T0+4}, v{T0+4}, v39, s[58:59]")
            for r in range(4):
                e(f"v_add_f32 v{T0+8+r}, v{T0+r}, v{T0+4+r}")
                e(f"v_sub_f32 v{T0+4+r}, v{T0+r}, v{T0+4+r}")
            off = PMBASE + 16 * qb * PM_PITCH + 64 * qa
            e(f"ds_write_b128 v40, {vr(T0+8)} offset:{off}")
            e(f"ds_write_b128 v40, {vr(T0+4)} offset:{off+PM_MAT}")
    e("v_lshlrev_b32 v41, 4, v0")
    e(f"v_add_u32 v41, {ZXBASE}, v41")
    for w in range(4):
        e(f"s_cmp_lg_u32 s21, {w}")
        e(f"s_cbranch_scc1 KB_ZW_{w}")
        for d in range(4):
            if d == w: continue
            si = (w - d - 1) % 4
            for tl in range(4):
                q = 2 * (d & 1) + (tl & 1); tq = 2 * (d >> 1) + (tl >> 1)
                T0 = 112 + 4 * tl
                for r in range(4):
                    e(f"v_accvgpr_read_b32 v{T0+r}, a{zacc(q,tq)+r}")
                e(f"ds_write_b128 v41, {vr(T0)} offset:{(d*3+si)*4096 + tl*1024}")
        for tl in range(4):
            q = 2 * (w & 1) + (tl & 1); tq = 2 * (w >> 1) + (tl >> 1)
            for r in range(4):
                e(f"v_accvgpr_read_b32 v{128+4*tl+r}, a{zacc(q,tq)+r}")
        e.label(f"KB_ZW_{w}")
    e("s_and_b32 s64, s21, 1")
    e("s_lshr_b32 s65, s21, 1")
    e("s_cmp_eq_u32 s64, 0")
    e("s_cselect_b32 s66, s53, s55")
    e("s_cmp_eq_u32 s65, 0")
    e("s_cselect_b32 s67, s52, s54")
    e("v_add_u32 v42, s67, v2")
    e("v_lshlrev_b32 v42, 10, v42")
    e("v_lshl_add_u32 v42, v3, 4, v42")
    e("s_lshl_b32 s66, s66, 1")
    e("v_add_u32 v42, s66, v42")
    e(f"buffer_load_dwordx4 v[144:147], v42, {sr(SX)}, 0 offen")
    e("v_add_u32 v43, 0x4000, v42")
    e(f"buffer_load_dwordx4 v[148:151], v43, {sr(SX)}, 0 offen")
    e("s_waitcnt lgkmcnt(0)")
    e("s_barrier")
    e("s_mul_i32 s63, s21, 12288")
    e("v_add_u32 v41, s63, v41")
    for si in range(3):
        for tl in range(4):
            e(f"ds_read_b128 {vr(64+16*si+4*tl)}, v41 offset:{si*4096 + tl*1024}")
    e("s_waitcnt lgkmcnt(0)")
    for tl in range(4):
        for r in range(4):
            e(f"v_add_f32 v{128+4*tl+r}, v{128+4*tl+r}, v{64+4*tl+r}")
            e(f"v_add_f32 v{80+4*tl+r}, v{80+4*tl+r}, v{96+4*tl+r}")
            e(f"v_add_f32 v{128+4*tl+r}, v{128+4*tl+r}, v{80+4*tl+r}")
    e("s_xor_b32 s63, s64, s65")
    e(f"s_mul_i32 s63, s63, {PM_MAT}")
    e("v_lshlrev_b32 v44, 3, v3")
    e("v_sub_u32 v45, 25, v44")
    e("s_cmp_eq_u32 s64, 0")
    e("s_cselect_b64 vcc, -1, 0")
    e("v_cndmask_b32 v44, v45, v44, vcc")
    e("v_sub_u32 v45, 32, v2")
    e("s_cmp_eq_u32 s65, 0")
    e("s_cselect_b64 vcc, -1, 0")
    e("v_cndmask_b32 v45, v45, v2, vcc")
    e(f"v_mul_u32_u24 v45, {PM_PITCH}, v45")
    e("v_lshl_add_u32 v44, v44, 2, v45")
    e("v_add_u32 v44, s63, v44")
    e(f"s_cmp_eq_u32 s65, 0")
    e(f"s_mov_b32 s68, {16*PM_PITCH}")
    e(f"s_mov_b32 s69, {-16*PM_PITCH}")
    e("s_cselect_b32 s63, s68, s69")
    e("v_add_u32 v45, s63, v44")
    for tq in range(2):
        for pw in range(4):
            for k in range(8):
                e(f"ds_read_b32 v{64 + 32*tq + 8*pw + k}, v{44+tq} offset:{PMBASE + pw*PM_WAVE + 4*k}")
        e("s_waitcnt lgkmcnt(0)")
        for k in range(8):
            b = 64 + 32 * tq
            e(f"v_add_f32 v{b+k}, v{b+k}, v{b+8+k}")
            e(f"v_add_f32 v{b+16+k}, v{b+16+k}, v{b+24+k}")
            e(f"v_add_f32 v{b+k}, v{b+k}, v{b+16+k}")
    e("s_waitcnt vmcnt(0)")
    for wc in range(2):
        e(f"s_cmp_lg_u32 s64, {wc}")
        e(f"s_cbranch_scc1 KB_FIN_{wc}")
        for tq in range(2):
            for half in range(2):
                tl = half + 2 * tq
                for r in range(4):
                    k8 = 4 * half + r
                    yi = 64 + 32 * tq + (7 - k8 if wc else k8)
                    zr = 128 + 4 * tl + r
                    xr = 144 + 4 * tq + (k8 >> 1)
                    e(f"v_add_f32 v{zr}, v{zr}, v{yi}")
                    if k8 & 1:
                        e(f"v_and_b32 v46, 0xffff0000, v{xr}")
                    else:
                        e(f"v_lshlrev_b32 v46, 16, v{xr}")
                    e(f"v_add_f32 v{zr}, v{zr}, v46")
            for d in range(4):
                tl = (d >> 1) + 2 * tq
                z0 = 128 + 4 * tl + 2 * (d & 1)
                e(f"v_cvt_pk_bf16_f32 v{152+4*tq+d}, v{z0}, v{z0+1}")
        e.label(f"KB_FIN_{wc}")
    e("s_nop 1")
    e(f"buffer_store_dwordx4 v[152:155], v42, {sr(SO)}, 0 offen")
    e(f"buffer_store_dwordx4 v[156:159], v43, {sr(SO)}, 0 offen")
    if PROF:
        e("s_waitcnt vmcnt(0)")
    stamp(e, 4)
    stamps_out(e, 1, 5, 16, 17)
    e.label("KB_END")
    e("s_endpgm")
    return e.text(), 256 + NACC

HEADER = open("parallel_sum__spectral_fnet__dense_activation_relu__prompt.s.ref").read().split("; Override launch")[0]

def main(out):
    ka, ka_v = gen_ka()
    kb, kb_v = gen_kb()
    t = HEADER
    t += f"; @launch kernel=fnet_ka_kernel grid=(256,1,1) block=(256,1,1) lds={KA_LDS}\n"
    t += f"; @launch kernel=fnet_kb_kernel grid=(256,1,1) block=(256,1,1) lds={KB_LDS}\n"
    t += '.amdgcn_target "amdgcn-amd-amdhsa--gfx950"\n.text\n'
    for name, body in (("fnet_ka_kernel", ka), ("fnet_kb_kernel", kb)):
        t += f".globl {name}\n.p2align 8\n.type {name},@function\n" + body
    t += '.section .rodata,"a"\n'
    for name, nv in (("fnet_ka_kernel", ka_v), ("fnet_kb_kernel", kb_v)):
        t += f""".p2align 6
.amdhsa_kernel {name}
  .amdhsa_next_free_vgpr {nv}
  .amdhsa_next_free_sgpr 96
  .amdhsa_accum_offset 256
  .amdhsa_group_segment_fixed_size 0
  .amdhsa_kernarg_size 88
  .amdhsa_user_sgpr_count 2
  .amdhsa_user_sgpr_kernarg_segment_ptr 1
  .amdhsa_system_sgpr_workgroup_id_x 1
.end_amdhsa_kernel
"""
    open(out, "w").write(t)

if __name__ == "__main__":
    main(sys.argv[1] if len(sys.argv) > 1 else "parallel_sum__spectral_fnet__dense_activation_relu__prompt.s")
```

```python
import sys, os, re

S, D, F = 2048, 512, 1792
H_OFF, ABT_OFF, W2T_OFF = 0, 0x800000, 0xA00000
H_BYTES = S * F * 2
ABT_PITCH = 2176
ABT_BYTES = 512 * ABT_PITCH
W2T_BYTES = 512 * F * 2
OOB = 0x40000000
PROF = int(os.environ.get("PROF", "0"))
PROF_OFF = 0x4000000

class Emit:
    def __init__(self):
        self.lines = []
        self.nvm = 0
    def __call__(self, s=""):
        m = re.search(r"offset:(-?\d+)", s)
        if m:
            o = int(m.group(1))
            if s.lstrip().startswith("buffer_"): assert 0 <= o <= 4095, s
            if s.lstrip().startswith("ds_"): assert 0 <= o <= 65535, s
        self.lines.append("    " + s if s and not s.endswith(":") else s)
    def vm(self, s):
        if s.endswith(" lds") and self.lines and " m0," in self.lines[-1]:
            self("s_nop 0")
        self(s)
        self.nvm += 1
        return self.nvm - 1
    def wait_vm(self, idx):
        n = self.nvm - idx - 1
        if n <= 62:
            self(f"s_waitcnt vmcnt({n})")
    def label(self, s):
        self.lines.append(s + ":")
    def text(self):
        return "\n".join(self.lines) + "\n"

def stamp(e, k):
    if PROF:
        e(f"s_memtime s[{80+2*k}:{81+2*k}]")
        if k == 0: e("s_memrealtime s[92:93]")
        e("s_waitcnt lgkmcnt(0)")
def stamps_out(e, kidx, nst, wslo, wshi):
    if not PROF: return
    e("s_memrealtime s[94:95]")
    e("s_waitcnt lgkmcnt(0)")
    e(f"s_add_u32 s76, s{wslo}, {PROF_OFF}")
    e(f"s_addc_u32 s77, s{wshi}, 0")
    e("s_and_b32 s77, s77, 0xffff")
    e(f"s_mov_b32 s78, {2*256*4*64}")
    e("s_mov_b32 s79, 0x00020000")
    e(f"s_add_u32 s74, s2, {kidx*256}")
    e("s_lshl_b32 s74, s74, 2")
    e("s_add_u32 s74, s74, s21")
    e("s_lshl_b32 s74, s74, 6")
    e("s_mov_b64 s[70:71], exec")
    e("s_mov_b64 exec, 1")
    e("v_mov_b32 v200, 0")
    for k in range(nst):
        e(f"v_mov_b32 v202, s{80+2*k}")
        e(f"v_mov_b32 v203, s{81+2*k}")
        e(f"buffer_store_dwordx2 v[202:203], v200, s[76:79], s74 offen offset:{8*k}")
    for k in (6, 7):
        e(f"v_mov_b32 v202, s{80+2*k}")
        e(f"v_mov_b32 v203, s{81+2*k}")
        e(f"buffer_store_dwordx2 v[202:203], v200, s[76:79], s74 offen offset:{8*k}")
    e("s_mov_b64 exec, s[70:71]")

def vr(base, n=4): return f"v[{base}:{base+n-1}]"
def ar(base, n=4): return f"a[{base}:{base+n-1}]"
def sr(base, n=4): return f"s[{base}:{base+n-1}]"

def make_srd(e, dst, lo, hi, nbytes, add=0):
    if add:
        e(f"s_add_u32 s{dst}, s{lo}, {add}")
        e(f"s_addc_u32 s{dst+1}, s{hi}, 0")
    else:
        e(f"s_mov_b32 s{dst}, s{lo}")
        e(f"s_mov_b32 s{dst+1}, s{hi}")
    e(f"s_and_b32 s{dst+1}, s{dst+1}, 0xffff")
    e(f"s_mov_b32 s{dst+2}, {nbytes}")
    e(f"s_mov_b32 s{dst+3}, 0x00020000")

WPBASE = 0
WPPITCH = 1056
STG0 = 32 * WPPITCH
STGSZ = 30720
XOFF, W1OFF = 0, 16384
NSTG = 4
TBASE = STG0 + NSTG * STGSZ
KA_LDS = TBASE + 7168

def gen_ka():
    e = Emit()
    e.label("fnet_ka_kernel")
    e("s_cmp_ge_u32 s2, 256")
    e("s_cbranch_scc1 KA_END")
    e("s_load_dwordx2 s[4:5], s[0:1], 0")
    e("s_load_dwordx4 s[12:15], s[0:1], 48")
    e("s_load_dwordx4 s[8:11], s[0:1], 24")
    e("s_load_dwordx2 s[16:17], s[0:1], 80")
    e("s_and_b32 s3, s2, 7")
    e("s_lshr_b32 s18, s2, 3")
    e("s_and_b32 s19, s3, 3")
    e("s_lshl_b32 s19, s19, 2")
    e("s_and_b32 s20, s18, 3")
    e("s_add_u32 s19, s19, s20")
    e("s_lshr_b32 s20, s3, 2")
    e("s_lshl_b32 s20, s20, 3")
    e("s_lshr_b32 s21, s18, 2")
    e("s_add_u32 s20, s20, s21")
    e("v_lshrrev_b32 v1, 6, v0")
    e("v_and_b32 v0, 63, v0")
    e("v_and_b32 v2, 15, v0")
    e("v_readfirstlane_b32 s21, v1")
    e("v_lshrrev_b32 v3, 4, v0")
    SX, SW1, SWPA, SWPB, SW2, SH, SAB, SW2T = 24, 28, 32, 36, 40, 44, 48, 52
    e("s_mov_b32 s61, 3584")
    e("s_lshl_b32 s22, s19, 6")
    e("s_lshl_b32 s23, s21, 4")
    e("s_add_u32 s22, s22, s23")
    XV = 12
    e("v_lshrrev_b32 v20, 3, v0")
    e("v_lshrrev_b32 v21, 4, v0")
    e("v_and_b32 v22, 7, v0")
    e("v_mov_b32 v6, 0x400")
    for h in range(2):
        e(f"v_add_u32 v23, {8*h}, v20")
        e("v_add_u32 v23, s22, v23")
        e(f"v_xor_b32 v24, {4*h}, v21")
        e("v_xor_b32 v24, v22, v24")
        e("v_lshlrev_b32 v24, 4, v24")
        e(f"v_lshl_add_u32 v{XV+h}, v23, 10, v24")
        e("v_sub_u32 v25, 0x800, v23")
        e("v_cmp_eq_u32 vcc, 0, v23")
        e("s_nop 1")
        e("v_cndmask_b32 v25, v25, v6, vcc")
        e(f"v_lshl_add_u32 v{XV+2+h}, v25, 10, v24")
    W1V = 16
    e("s_mul_i32 s59, s20, 224")
    e("s_mov_b32 s60, 4682")
    e("s_and_b32 s62, s21, 1")
    e("s_add_u32 s62, s62, 12")
    for n in range(4):
        z, p, cc, k, t1, t2 = 28, 29, 30, 31, 32, 33
        if n < 3:
            e(f"s_add_u32 s63, s21, {4*n}")
        else:
            e("s_mov_b32 s63, s62")
        e("s_lshl_b32 s63, s63, 6")
        e(f"v_add_u32 v{z}, s63, v0")
        e(f"v_mul_lo_u32 v{p}, v{z}, s60")
        e(f"v_lshrrev_b32 v{p}, 16, v{p}")
        e(f"v_mul_u32_u24 v{cc}, 14, v{p}")
        e(f"v_sub_u32 v{cc}, v{z}, v{cc}")
        e(f"v_and_b32 v{k}, 0x33, v{p}")
        e(f"v_and_b32 v{t1}, 4, v{p}")
        e(f"v_lshlrev_b32 v{t1}, 1, v{t1}")
        e(f"v_and_b32 v{t2}, 8, v{p}")
        e(f"v_lshrrev_b32 v{t2}, 1, v{t2}")
        e(f"v_or3_b32 v{k}, v{k}, v{t1}, v{t2}")
        e(f"v_mul_lo_u32 v{k}, v{k}, s61")
        e(f"v_lshl_add_u32 v{k}, v{cc}, 4, v{k}")
        e(f"v_add_u32 v{W1V+n}, s59, v{k}")
    e("s_cmp_lt_u32 s21, 2")
    e("s_cselect_b64 s[68:69], -1, 1")
    e("s_lshl_b32 s72, s21, 12")
    e("s_lshl_b32 s73, s21, 10")
    e("s_lshl_b32 s67, s62, 10")
    e("s_lshr_b32 s75, s2, 3")
    e("s_waitcnt lgkmcnt(0)")
    stamp(e, 0)
    make_srd(e, SX, 4, 5, S * D * 2)
    make_srd(e, SW1, 12, 13, D * F * 2)
    stage_last = {}
    def stage_ops(st):
        buf = STG0 + (st % NSTG) * STGSZ
        ops = []
        def mk_x(t, h):
            def f():
                e(f"s_mov_b32 s63, {128*st}")
                e(f"s_add_u32 m0, s72, {buf + XOFF + (2*t+h)*1024}")
                e.vm(f"buffer_load_dwordx4 v{XV+2*t+h}, {sr(SX)}, s63 offen lds")
            return f
        def mk_w(n):
            def f():
                e(f"s_mov_b32 s63, {st*64*3584}")
                if n < 3:
                    e(f"s_add_u32 m0, s73, {buf + W1OFF + n*4096}")
                else:
                    e(f"s_add_u32 m0, s67, {buf + W1OFF}")
                    e("s_mov_b64 exec, s[68:69]")
                stage_last[st] = e.vm(f"buffer_load_dwordx4 v{W1V+n}, {sr(SW1)}, s63 offen lds")
                if n == 3:
                    e("s_mov_b64 exec, -1")
            return f
        for t in range(2):
            for h in range(2):
                ops.append(mk_x(t, h))
        for n in range(4):
            ops.append(mk_w(n))
        return ops
    def issue_stage(st):
        for f in stage_ops(st): f()
    pend_dma = []
    issue_stage(0)
    e("s_cmp_lt_u32 s20, 8")
    e(f"s_cselect_b32 s{SWPB}, s8, s10")
    e(f"s_cselect_b32 s{SWPB+1}, s9, s11")
    e(f"s_and_b32 s{SWPB+1}, s{SWPB+1}, 0xffff")
    e(f"s_mov_b32 s{SWPB+2}, {D*D*2}")
    e(f"s_mov_b32 s{SWPB+3}, 0x00020000")
    e("s_cmp_eq_u32 s21, 0")
    e("s_cselect_b32 s58, 9, 8")
    e("s_cmp_lt_u32 s20, s58")
    e(f"s_cselect_b32 s{SWPA}, s8, s10")
    e(f"s_cselect_b32 s{SWPA+1}, s9, s11")
    e(f"s_and_b32 s{SWPA+1}, s{SWPA+1}, 0xffff")
    e(f"s_mov_b32 s{SWPA+2}, {D*D*2}")
    e(f"s_mov_b32 s{SWPA+3}, 0x00020000")
    e("s_lshl_b32 s23, s20, 5")
    e("s_lshl_b32 s56, s21, 3")
    e("s_add_u32 s23, s23, s56")
    e("s_lshl_b32 s23, s23, 10")
    e("v_lshlrev_b32 v10, 4, v0")
    e(f"s_mul_i32 s57, s56, {WPPITCH}")
    e(f"s_add_u32 s57, s57, {WPBASE}")
    for rr in range(8):
        e(f"s_add_u32 m0, s57, {rr*WPPITCH}")
        e(f"s_add_u32 s58, s23, {rr*1024}")
        wp_last = e.vm(f"buffer_load_dwordx4 v10, {sr(SWPA if rr==0 else SWPB)}, s58 offen lds")
    for st in range(1, 4):
        issue_stage(st)
    stage_last[0] = wp_last
    make_srd(e, SW2, 14, 15, F * D * 2)
    e("v_lshrrev_b32 v26, 2, v0")
    e("v_and_b32 v27, 3, v0")
    e("v_lshlrev_b32 v27, 4, v27")
    e("v_lshl_add_u32 v26, v26, 10, v27")
    e("s_mul_i32 s64, s20, 112")
    e("s_lshl_b32 s65, s21, 4")
    e("s_add_u32 s64, s64, s65")
    e("s_lshl_b32 s64, s64, 10")
    e("s_lshl_b32 s65, s19, 6")
    e("s_add_u32 s64, s64, s65")
    e(f"s_add_u32 m0, s73, {TBASE}")
    w2op = e.vm(f"buffer_load_dwordx4 v26, {sr(SW2)}, s64 offen lds")
    e("s_cmp_eq_u32 s21, 3")
    e("s_cbranch_scc1 KA_NOW2")
    e(f"s_add_u32 m0, s73, {TBASE + 4096}")
    e(f"s_add_u32 s66, s64, {64*1024}")
    e(f"buffer_load_dwordx4 v26, {sr(SW2)}, s66 offen lds")
    e.label("KA_NOW2")
    stamp(e, 1)
    make_srd(e, SH, 16, 17, H_BYTES, H_OFF)
    make_srd(e, SAB, 16, 17, ABT_BYTES, ABT_OFF)
    make_srd(e, SW2T, 16, 17, W2T_BYTES, W2T_OFF)
    ONES = 92
    for r in range(4):
        e(f"v_mov_b32 v{ONES+r}, 0x3f803f80")
    for a in range(52):
        e(f"v_accvgpr_write_b32 a{a}, 0")
    def csa(q): return 4 * q
    def sma(t): return 36 + 4 * t
    def sqa(t): return 44 + 4 * t
    e("v_add_u32 v4, s22, v2")
    e("v_sub_u32 v5, 0x800, v4")
    e("v_cmp_eq_u32 vcc, 0, v4")
    e("s_nop 1")
    e("v_cndmask_b32 v5, v5, v6, vcc")
    e("v_lshrrev_b32 v44, 1, v3")
    e("v_lshlrev_b32 v44, 4, v44")
    e("v_and_b32 v45, 1, v3")
    e("v_lshl_add_u32 v44, v45, 2, v44")
    e("v_lshrrev_b32 v45, 2, v2")
    e("v_add_u32 v44, v44, v45")
    e("v_mul_u32_u24 v44, 224, v44")
    e("v_and_b32 v45, 3, v0")
    e("v_lshl_add_u32 v44, v45, 3, v44")
    e("v_lshrrev_b32 v45, 1, v2")
    e("v_xor_b32 v45, v45, v3")
    e("v_lshlrev_b32 v45, 4, v45")
    e("v_lshl_add_u32 v45, v2, 7, v45")
    e("v_add_u32 v45, s72, v45")
    e("v_xor_b32 v43, 64, v45")
    e(f"v_mul_u32_u24 v46, {WPPITCH}, v2")
    e("v_lshl_add_u32 v46, v3, 4, v46")
    e(f"v_add_u32 v46, {WPBASE}, v46")
    ACC = 176
    for a in range(72):
        e(f"v_mov_b32 v{ACC+a}, 0")
    def acc(q, t): return ACC + (2 * q + t) * 4
    e("v_and_b32 v47, 1, v3")
    e("v_lshlrev_b32 v47, 3, v47")
    e("v_lshrrev_b32 v48, 2, v2")
    e("v_add_u32 v47, v47, v48")
    e("v_lshlrev_b32 v47, 6, v47")
    e("v_lshrrev_b32 v48, 1, v3")
    e("v_lshl_add_u32 v47, v48, 5, v47")
    e("v_and_b32 v48, 3, v0")
    e("v_lshl_add_u32 v47, v48, 3, v47")
    e("v_add_u32 v47, s73, v47")
    e(f"v_add_u32 v47, {TBASE}, v47")
    HA = (61, 64)
    e("s_mul_i32 s65, s20, 224")
    for t in range(2):
        e(f"v_mul_lo_u32 v{HA[t]}, v{4+t}, s61")
        e(f"v_lshl_add_u32 v{HA[t]}, v3, 3, v{HA[t]}")
        e(f"v_add_u32 v{HA[t]}, s65, v{HA[t]}")
    e("v_lshlrev_b32 v80, 4, v3")
    for r in range(4):
        e(f"v_add_u32 v{81+r}, {4*r}, v80")
    e("v_mov_b32 v62, 0")
    e("v_mov_b32 v63, 1.0")
    e("v_mov_b32 v68, -1.0")
    e("s_lshl_b32 s65, s20, 5")
    e("v_add_u32 v65, s65, v2")
    e(f"s_mov_b32 s66, {ABT_PITCH}")
    e("v_mul_lo_u32 v66, v65, s66")
    e("v_add_u32 v67, 0x800, v66")
    e("v_lshl_add_u32 v85, v3, 2, s22")
    e("v_lshl_add_u32 v66, v85, 1, v66")
    e("v_cmp_ne_u32 vcc, 0, v85")
    e("s_nop 1")
    e("v_cndmask_b32 v86, v62, v63, vcc")
    WF = 96; NSL = 10
    XFR = 136
    TRA, XA0, XA1 = 58, 59, 60
    LA = 8
    seq = []
    for st in range(8):
        for k2 in range(2):
            seq.append(("x", st, k2, 0)); seq.append(("x", st, k2, 1))
            for q in range(9):
                seq.append(("w", st, k2, q))
    def xreg(st, k2, t): return XFR + 8 * ((2 * st + k2) % 4) + 4 * t
    wslot = {}
    cnt = [0]
    def pre_stage(st):
        buf = STG0 + (st % NSTG) * STGSZ
        if st in stage_last and not (os.environ.get("NOWAIT") and st > 0): e.wait_vm(stage_last[st])
        e("s_barrier")
        if st == 0: stamp(e, 2)
        assert not pend_dma
        if 2 <= st and st + 2 < 8 and not os.environ.get("NODMA"):
            pend_dma.extend(stage_ops(st + 2))
        e(f"v_add_u32 v{TRA}, {buf + W1OFF}, v44")
        e(f"v_add_u32 v{XA0}, {buf + XOFF}, v45")
        e(f"v_add_u32 v{XA1}, {buf + XOFF}, v43")
    def issue(m):
        kind, st, k2, q = seq[m]
        if kind == "x" and k2 == 0 and q == 0:
            pre_stage(st)
        if kind == "x":
            e(f"ds_read_b128 {vr(xreg(st,k2,q))}, v{XA0 if k2==0 else XA1} offset:{2048*q}")
            return
        sl = WF + 4 * (cnt[0] % NSL); cnt[0] += 1
        wslot[(st, k2, q)] = sl
        if q < 7:
            off = 7168 * k2 + 32 * q
            e(f"ds_read_b64_tr_b16 v[{sl}:{sl+1}], v{TRA} offset:{off}")
            e(f"ds_read_b64_tr_b16 v[{sl+2}:{sl+3}], v{TRA} offset:{off+1792}")
        else:
            e(f"ds_read_b128 {vr(sl)}, v46 offset:{16*WPPITCH*(q-7) + 64*(2*st+k2)}")
    nrd = [1 if (it[0] == "x" or it[3] >= 7) else 2 for it in seq]
    for n in range(LA):
        issue(n)
    for n, it in enumerate(seq):
        if n + LA < len(seq):
            issue(n + LA)
        out = sum(nrd[n + 1: min(len(seq), n + LA + 1)])
        kind, st, k2, q = it
        if kind == "x":
            continue
        e(f"s_waitcnt lgkmcnt({min(out,15)})")
        sl = wslot[(st, k2, q)]
        for t in range(2):
            if q < 7:
                e(f"v_mfma_f32_16x16x32_bf16 {vr(acc(q,t))}, {vr(sl)}, {vr(xreg(st,k2,t))}, {vr(acc(q,t))}")
            else:
                e(f"v_mfma_f32_16x16x32_bf16 {vr(acc(q,t))}, {vr(xreg(st,k2,t))}, {vr(sl)}, {vr(acc(q,t))}")
        if q < 7:
            e(f"v_mfma_f32_16x16x32_bf16 {ar(csa(q))}, {vr(sl)}, {vr(ONES)}, {ar(csa(q))}")
        else:
            e(f"v_mfma_f32_16x16x32_bf16 {ar(csa(q))}, {vr(ONES)}, {vr(sl)}, {ar(csa(q))}")
        if q in (1, 5):
            t_ = q >> 2
            e(f"v_mfma_f32_16x16x32_bf16 {ar(sma(t_))}, {vr(ONES)}, {vr(xreg(st,k2,t_))}, {ar(sma(t_))}")
        if q in (3, 7):
            t_ = q >> 2
            e(f"v_mfma_f32_16x16x32_bf16 {ar(sqa(t_))}, {vr(xreg(st,k2,t_))}, {vr(xreg(st,k2,t_))}, {ar(sqa(t_))}")
        if pend_dma and q % 2 == 0:
            pend_dma.pop(0)()
    stamp(e, 3)
    W2R = 50
    e.wait_vm(w2op)
    for n in range(2):
        for h in range(2):
            e(f"ds_read_b64_tr_b16 v[{W2R+4*n+2*h}:{W2R+1+4*n+2*h}], v47 offset:{4096*n + 256*h}")
    SUM, SQ = 42, 44
    e("v_and_b32 v96, 3, v2")
    e("v_lshrrev_b32 v97, 2, v2")
    e("v_lshl_add_u32 v97, v97, 4, v2")
    e("v_lshlrev_b32 v97, 2, v97")
    for t in range(2):
        e(f"v_accvgpr_read_b32 v{SUM+t}, a{sma(t)}")
        for r in range(4):
            e(f"v_accvgpr_read_b32 v{100+4*t+r}, a{sqa(t)+r}")
    for r in range(1, 4):
        e(f"v_cmp_eq_u32 vcc, {r}, v96")
        e("s_nop 1")
        for t in range(2):
            e(f"v_cndmask_b32 v{100+4*t}, v{100+4*t}, v{100+4*t+r}, vcc")
    for t in range(2):
        e(f"ds_bpermute_b32 v{SQ+t}, v97, v{100+4*t}")
    CSV = 116
    for q in range(9):
        for r in range(4):
            e(f"v_accvgpr_read_b32 v{CSV+4*q+r}, a{csa(q)+r}")
    e("s_waitcnt lgkmcnt(0)")
    e("v_lshrrev_b32 v48, 1, v3")
    e("v_lshl_add_u32 v48, v48, 4, v2")
    e("s_lshl_b32 s65, s19, 5")
    e("v_add_u32 v48, s65, v48")
    e("v_mul_lo_u32 v48, v48, s61")
    e("v_and_b32 v49, 1, v3")
    e("v_lshl_add_u32 v48, v49, 4, v48")
    e("s_mul_i32 s65, s20, 224")
    e("s_lshl_b32 s66, s21, 5")
    e("s_add_u32 s65, s65, s66")
    e("v_add_u32 v48, s65, v48")
    e(f"buffer_store_dwordx4 v[{W2R}:{W2R+3}], v48, {sr(SW2T)}, 0 offen")
    e("s_cmp_eq_u32 s21, 3")
    e("s_cbranch_scc1 KA_NOT2")
    e(f"buffer_store_dwordx4 v[{W2R+4}:{W2R+7}], v48, {sr(SW2T)}, 0 offen offset:128")
    e.label("KA_NOT2")
    NM, RP = 104, 108
    MB = 112
    e("s_mov_b32 s67, 0x3b000000")
    e("s_mov_b32 s68, 0x3727c5ac")
    for t in range(2):
        a, b = 96 + t, 98 + t
        e(f"v_mul_f32 v{a}, s67, v{SUM+t}")
        e(f"v_mul_f32 v{b}, s67, v{SQ+t}")
        e(f"v_fma_f32 v{b}, -v{a}, v{a}, v{b}")
        e(f"v_max_f32 v{b}, 0, v{b}")
        e(f"v_cvt_pk_bf16_f32 v{MB+t}, v{a}, v{a}")
        e(f"v_lshlrev_b32 v{MB+t}, 16, v{MB+t}")
        e(f"v_cvt_pk_bf16_f32 v{b}, v{b}, v{b}")
        e(f"v_lshlrev_b32 v{b}, 16, v{b}")
        e(f"v_add_f32 v{b}, s68, v{b}")
        e(f"v_cvt_pk_bf16_f32 v{b}, v{b}, v{b}")
        e(f"v_lshlrev_b32 v{b}, 16, v{b}")
        e(f"v_sqrt_f32 v{b}, v{b}")
        e("s_nop 0")
        e(f"v_cvt_pk_bf16_f32 v{b}, v{b}, v{b}")
        e(f"v_lshlrev_b32 v{b}, 16, v{b}")
        e(f"v_rcp_f32 v{RP+2*t}, v{b}")
        e("s_nop 0")
        e(f"v_mov_b32 v{RP+2*t+1}, v{RP+2*t}")
        e(f"v_sub_f32 v{NM+2*t}, 0, v{MB+t}")
        e(f"v_sub_f32 v{NM+2*t+1}, 0, v{MB+t}")
    MT, RT = 152, 160
    for t in range(2):
        for r in range(4):
            e(f"ds_bpermute_b32 v{MT+4*t+r}, v{81+r}, v{MB+t}")
            e(f"ds_bpermute_b32 v{RT+4*t+r}, v{81+r}, v{RP+2*t}")
    stamp(e, 4)
    for q in range(7):
        for t in range(2):
            A = acc(q, t)
            for h in range(2):
                e(f"v_pk_fma_f32 v[{A+2*h}:{A+2*h+1}], v[{CSV+4*q+2*h}:{CSV+4*q+2*h+1}], v[{NM+2*t}:{NM+2*t+1}], v[{A+2*h}:{A+2*h+1}]")
            for h in range(2):
                e(f"v_pk_mul_f32 v[{A+2*h}:{A+2*h+1}], v[{A+2*h}:{A+2*h+1}], v[{RP+2*t}:{RP+2*t+1}]")
            e(f"v_cvt_pk_bf16_f32 v{A}, v{A}, v{A+1}")
            e(f"v_cvt_pk_bf16_f32 v{A+1}, v{A+2}, v{A+3}")
            e(f"v_pk_max_i16 v{A}, v{A}, 0")
            e(f"v_pk_max_i16 v{A+1}, v{A+1}, 0")
            e(f"buffer_store_dwordx2 v[{A}:{A+1}], v{HA[t]}, {sr(SH)}, 0 offen offset:{32*q}")
    e(f"s_mov_b32 s72, {16*ABT_PITCH}")
    e("s_waitcnt lgkmcnt(0)")
    for q in range(7, 9):
        A0, A1, SG = acc(q, 0), acc(q, 1), 168
        e(f"v_add_u32 v{SG}, {16*(q-7)}, v65")
        e(f"v_cmp_gt_u32 vcc, 0x101, v{SG}")
        e("s_nop 1")
        e(f"v_cndmask_b32 v{SG}, v68, v63, vcc")
        e(f"v_mul_f32 v{SG+1}, v{SG}, v86")
        for r in range(4):
            e(f"v_fma_f32 v{A0+r}, -v{MT+r}, v{CSV+4*q}, v{A0+r}")
            e(f"v_fma_f32 v{A1+r}, -v{MT+4+r}, v{CSV+4*q}, v{A1+r}")
        for r in range(4):
            e(f"v_mul_f32 v{A0+r}, v{RT+r}, v{A0+r}")
            e(f"v_mul_f32 v{A1+r}, v{RT+4+r}, v{A1+r}")
        for r in range(4):
            e(f"v_fma_f32 v{A0+r}, v{SG+(1 if r==0 else 0)}, v{A1+r}, v{A0+r}")
        e(f"v_cvt_pk_bf16_f32 v{SG+2}, v{A0}, v{A0+1}")
        e(f"v_cvt_pk_bf16_f32 v{SG+3}, v{A0+2}, v{A0+3}")
        so = "0" if q == 7 else "s72"
        e(f"buffer_store_dwordx2 v[{SG+2}:{SG+3}], v66, {sr(SAB)}, {so} offen")
        e("s_cmp_lg_u32 s22, 0")
        e(f"s_cbranch_scc1 KA_S0_{q}")
        e(f"v_cvt_pk_bf16_f32 v{SG+4}, v{A1}, v62")
        e("s_mov_b64 s[70:71], exec")
        e("s_mov_b64 exec, 0xffff")
        e(f"buffer_store_dword v{SG+4}, v67, {sr(SAB)}, {so} offen")
        e("s_mov_b64 exec, s[70:71]")
        e.label(f"KA_S0_{q}")
    if PROF:
        e("s_waitcnt vmcnt(0)")
    stamp(e, 5)
    stamps_out(e, 0, 6, 16, 17)
    e("s_cmp_lg_u32 s19, 0")
    e("s_cbranch_scc1 KA_END")
    e("s_cmp_lg_u32 s21, 1")
    e("s_cbranch_scc1 KA_END")
    e("s_lshl_b32 s65, s20, 5")
    e("v_add_u32 v65, s65, v0")
    e(f"s_mov_b32 s66, {ABT_PITCH}")
    e("v_mul_lo_u32 v66, v65, s66")
    e("v_add_u32 v66, 2052, v66")
    e("v_cmp_gt_u32 vcc, 32, v0")
    e("s_and_saveexec_b64 s[70:71], vcc")
    for d in range(15):
        e(f"buffer_store_dword v62, v66, {sr(SAB)}, 0 offen offset:{4*d}")
    e("s_mov_b64 exec, s[70:71]")
    e.label("KA_END")
    e("s_endpgm")
    return e.text(), 256 + 52

PM_PITCH = 52 * 4
PM_MAT = 48 * PM_PITCH
PM_WAVE = 2 * PM_MAT
PMBASE = 0
ZXBASE = 4 * PM_WAVE
RINGW = 32768
KB_LDS = max(ZXBASE + 4 * 3 * 4096, 4 * RINGW)

def gen_kb():
    e = Emit()
    e.label("fnet_kb_kernel")
    e("s_cmp_ge_u32 s2, 256")
    e("s_cbranch_scc1 KB_END")
    e("s_load_dwordx2 s[4:5], s[0:1], 0")
    e("s_load_dwordx4 s[8:11], s[0:1], 8")
    e("s_load_dwordx2 s[12:13], s[0:1], 64")
    e("s_load_dwordx2 s[16:17], s[0:1], 80")
    e("s_and_b32 s3, s2, 7")
    e("s_lshr_b32 s18, s2, 3")
    e("s_and_b32 s19, s3, 3")
    e("s_lshl_b32 s19, s19, 3")
    e("s_and_b32 s20, s18, 7")
    e("s_add_u32 s19, s19, s20")
    e("s_lshr_b32 s20, s3, 2")
    e("s_lshl_b32 s20, s20, 2")
    e("s_lshr_b32 s21, s18, 3")
    e("s_add_u32 s20, s20, s21")
    e("v_lshrrev_b32 v1, 6, v0")
    e("v_and_b32 v0, 63, v0")
    e("v_and_b32 v2, 15, v0")
    e("v_readfirstlane_b32 s21, v1")
    e("v_lshrrev_b32 v3, 4, v0")
    e("s_waitcnt lgkmcnt(0)")
    stamp(e, 0)
    SX, SO, SH, SW2T, SAB, SWR, SWI = 24, 28, 32, 36, 40, 44, 48
    make_srd(e, SX, 4, 5, S * D * 2)
    make_srd(e, SO, 12, 13, S * D * 2)
    make_srd(e, SH, 16, 17, H_BYTES, H_OFF)
    make_srd(e, SW2T, 16, 17, W2T_BYTES, W2T_OFF)
    make_srd(e, SAB, 16, 17, ABT_BYTES, ABT_OFF)
    make_srd(e, SWR, 8, 9, S * S * 2)
    make_srd(e, SWI, 10, 11, S * S * 2)
    e("s_mov_b32 s61, 3584")
    e(f"s_mov_b32 s62, {ABT_PITCH}")
    e("s_lshl_b32 s52, s19, 5")
    e("s_lshl_b32 s53, s20, 5")
    e("s_sub_u32 s54, 2016, s52")
    e("s_sub_u32 s55, 480, s53")
    e("s_mul_i32 s56, s21, 896")
    e("s_lshl_b32 s57, s21, 9")
    e("v_lshlrev_b32 v4, 4, v3")
    e(f"v_mov_b32 v8, {OOB}")
    e("s_cmp_eq_u32 s21, 3")
    e("s_cselect_b32 s58, 33, 0")
    SETR = [64, 160]
    XR = SETR[1]
    for qa in range(3):
        e(f"v_add_u32 v7, {16*qa}, v2")
        e("v_add_u32 v9, s53, v7")
        e("v_mul_lo_u32 v36, v9, s62")
        e("v_add_u32 v38, 0x800, v36")
        e("v_add_u32 v38, v38, v4")
        e("v_cmp_gt_u32 vcc, s58, v7")
        e("s_nop 1")
        e(f"v_cndmask_b32 v{30+qa}, v8, v38, vcc")
        e("v_add_u32 v9, s52, v7")
        e("v_lshlrev_b32 v36, 12, v9")
        e("v_add_u32 v38, 0x800, v36")
        e("v_add_u32 v38, v38, v4")
        e(f"v_cndmask_b32 v{33+qa}, v8, v38, vcc")
    xops = []
    for qa in range(3):
        xops.append(e.vm(f"buffer_load_dwordx4 {vr(XR+4*qa)}, v{30+qa}, {sr(SAB)}, 0 offen"))
    for qa in range(3):
        xops.append(e.vm(f"buffer_load_dwordx4 {vr(XR+12+4*qa)}, v{33+qa}, {sr(SWR)}, 0 offen"))
    e("v_lshrrev_b32 v20, 3, v0")
    e("v_lshrrev_b32 v21, 4, v0")
    e("v_and_b32 v22, 7, v0")
    PA, PH, PW, PB, PBR = 10, 14, 16, 18, 36
    for pi in range(4):
        e("v_and_b32 v23, 1, v21")
        e(f"v_or_b32 v23, {pi<<1}, v23")
        e("v_xor_b32 v23, v22, v23")
        e(f"v_add_u32 v24, {8*pi}, v20")
        e("v_mul_lo_u32 v24, v24, s61")
        e(f"v_lshl_add_u32 v{PA+pi}, v23, 4, v24")
    for h in range(2):
        e(f"v_xor_b32 v23, {4*h}, v21")
        e("v_xor_b32 v23, v22, v23")
        e("v_lshlrev_b32 v23, 4, v23")
        e(f"v_add_u32 v24, {8*h}, v20")
        e("v_mul_lo_u32 v25, v24, s61")
        e(f"v_add_u32 v{PH+h}, v25, v23")
        e(f"v_lshl_add_u32 v{PW+h}, v24, 12, v23")
        e("v_mul_lo_u32 v25, v24, s62")
        e(f"v_add_u32 v{PB+h}, v25, v23")
        e("v_sub_u32 v24, 15, v24")
        e("v_mul_lo_u32 v25, v24, s62")
        e(f"v_add_u32 v{PBR+h}, v25, v23")
    e("s_mul_i32 s64, s53, s61"); e("s_add_u32 s64, s64, s56")
    e("s_mul_i32 s65, s55, s61"); e("s_add_u32 s65, s65, s56")
    e("s_mul_i32 s66, s52, s61"); e("s_add_u32 s66, s66, s56")
    e(f"s_add_u32 s67, s66, {16*3584}")
    e("s_mul_i32 s68, s54, s61"); e("s_add_u32 s68, s68, s56")
    e(f"s_add_u32 s69, s68, {16*3584}")
    e("s_lshl_b32 s70, s52, 12"); e("s_add_u32 s70, s70, s57")
    e(f"s_add_u32 s71, s70, {16*4096}")
    e("s_mul_i32 s72, s53, s62"); e("s_add_u32 s72, s72, s57")
    e(f"s_add_u32 s73, s72, {16*ABT_PITCH}")
    e("s_sub_u32 s74, 497, s53"); e("s_mul_i32 s74, s74, s62"); e("s_add_u32 s74, s74, s57")
    e(f"s_sub_u32 s75, s74, {16*ABT_PITCH}")
    e("v_add_u32 v23, s57, v4")
    e("s_add_u32 s59, s53, 32")
    e("s_mul_i32 s60, s59, s62")
    e("v_add_u32 v26, s60, v23")
    e("s_sub_u32 s60, 512, s59")
    e("s_mul_i32 s60, s60, s62")
    e("s_cmp_eq_u32 s59, 256")
    e(f"s_cselect_b32 s60, {OOB}, s60")
    e("v_add_u32 v27, s60, v23")
    e("s_add_u32 s59, s52, 32")
    e("s_lshl_b32 s59, s59, 12")
    e("v_add_u32 v28, s59, v23")
    e("s_lshl_b32 s63, s21, 15")
    RS0, RS1, RA0, RA1 = 40, 41, 42, 43
    e("v_lshrrev_b32 v23, 1, v2")
    e("v_xor_b32 v23, v23, v3")
    e("v_lshlrev_b32 v23, 4, v23")
    e("v_lshl_add_u32 v23, v2, 7, v23")
    e(f"v_add_u32 v{RS0}, s63, v23")
    e(f"v_xor_b32 v{RS1}, 64, v{RS0}")
    e("v_lshrrev_b32 v23, 2, v2")
    e("v_and_b32 v24, 3, v2")
    e("v_lshl_add_u32 v25, v23, 3, v24")
    e("v_lshrrev_b32 v24, 1, v24")
    e("v_lshl_add_u32 v24, v23, 1, v24")
    e("v_xor_b32 v24, v24, v3")
    e("v_lshlrev_b32 v24, 4, v24")
    e("v_lshl_add_u32 v24, v25, 7, v24")
    e(f"v_add_u32 v{RA0}, s63, v24")
    e(f"v_xor_b32 v{RA1}, 64, v{RA0}")
    NACC = 136
    def zacc(q, tq): return (4 * q + tq) * 4
    def cacc(qa, qb): return 64 + (3 * qa + qb) * 4
    def sacc(qa, qb): return 100 + (3 * qa + qb) * 4
    stages = [("D", k) for k in range(4)] + [("Z", k) for k in range(7)]
    def groups_of(si):
        kind, k = stages[si]
        R = SETR[si % 2]
        gl = []
        if kind == "Z":
            for b in range(2):
                pcs = [(SW2T, PA + pi, 64 + b) for pi in range(4)]
                rds = []
                for half in range(2):
                    for k2 in range(2):
                        rds.append((RA0 if k2 == 0 else RA1, 512 * half, R + 8 * (2 * b + half) + 4 * k2))
                gl.append((pcs, rds))
            for tq in range(4):
                pcs = [(SH, PH + h, 66 + tq) for h in range(2)]
                rds = [(RS0, 0, R + 32 + 8 * tq), (RS1, 0, R + 32 + 8 * tq + 4)]
                gl.append((pcs, rds))
        else:
            specs = [(SAB, PB, 72), (SAB, PB, 73), (SWR, PW, 70), (SWR, PW, 71), (SAB, PBR, 74), (SAB, PBR, 75), (SWI, PW, 70), (SWI, PW, 71)]
            for gi, (srd, pv, sb) in enumerate(specs):
                pcs = [(srd, pv + h, sb) for h in range(2)]
                rds = [(RS0, 0, R + 8 * gi), (RS1, 0, R + 8 * gi + 4)]
                gl.append((pcs, rds))
        return gl
    allg = []
    pend = []
    slot = 0
    for si in range(len(stages)):
        for gi, (pcs, rds) in enumerate(groups_of(si)):
            allg.append((si, gi, pcs, rds, slot % 32)); slot += len(pcs); pend.append(slot)
    dma_last = {}
    def issue_group(gidx):
        si, gi, pcs, rds, s0 = allg[gidx]
        kind, k = stages[si]
        for pn, (srd, pv, sb) in enumerate(pcs):
            e(f"s_add_u32 m0, s63, {(s0+pn)*1024}")
            if pn == 0:
                e(f"s_add_u32 s76, s{sb}, {128*k}")
            dma_last[gidx] = e.vm(f"buffer_load_dwordx4 v{pv}, {sr(srd)}, s76 offen lds")
    direct_last = {}
    def issue_direct(si):
        kind, k = stages[si]
        if kind != "D": return
        R = SETR[si % 2] + 64
        for mi, (srd, vo) in enumerate([(SAB, 26), (SWR, 28), (SAB, 27), (SWI, 28)]):
            for k2 in range(2):
                direct_last[si] = e.vm(f"buffer_load_dwordx4 {vr(R+8*mi+4*k2)}, v{vo}, {sr(srd)}, 0 offen offset:{128*k+64*k2}")
    def mfmas(si):
        if si < 0:
            return [f"v_mfma_f32_16x16x32_bf16 {ar(cacc(qa,qb))}, {vr(XR+4*qa)}, {vr(XR+12+4*qb)}, {ar(cacc(qa,qb))}" for qa in range(3) for qb in range(3)], []
        kind, k = stages[si]
        R = SETR[si % 2]
        early, late = [], []
        if kind == "Z":
            for k2 in range(2):
                for q in range(4):
                    for tq in range(4):
                        early.append(f"v_mfma_f32_16x16x32_bf16 {ar(zacc(q,tq))}, {vr(R+8*q+4*k2)}, {vr(R+32+8*tq+4*k2)}, {ar(zacc(q,tq))}")
        else:
            def areg(mat, q, k2):
                return (R + 32 * mat + 8 * q + 4 * k2) if q < 2 else (R + 64 + 16 * mat + 4 * k2)
            def breg(mat, q, k2):
                return (R + 32 * mat + 16 + 8 * q + 4 * k2) if q < 2 else (R + 64 + 16 * mat + 8 + 4 * k2)
            for k2 in range(2):
                for mat in range(2):
                    fa = cacc if mat == 0 else sacc
                    for qa in range(3):
                        for qb in range(3):
                            s = f"v_mfma_f32_16x16x32_bf16 {ar(fa(qa,qb))}, {vr(areg(mat,qa,k2))}, {vr(breg(mat,qb,k2))}, {ar(fa(qa,qb))}"
                            (late if (qa == 2 or qb == 2) else early).append(s)
        return early, late
    gstart = {}
    for gidx, g in enumerate(allg):
        gstart.setdefault(g[0], gidx)
    nissued = 0
    pieces_issued = 0
    while nissued < len(allg) and pieces_issued + len(allg[nissued][2]) <= 32:
        issue_group(nissued); pieces_issued += len(allg[nissued][2]); nissued += 1
    issue_direct(0)
    for a in range(NACC):
        e(f"v_accvgpr_write_b32 a{a}, 0")
    stamp(e, 1)
    freed_q = []
    for si in range(len(stages) + 1):
        early, late = mfmas(si - 1)
        if si == 0:
            e.wait_vm(xops[-1])
        if si < len(stages):
            gids = [g for g in range(len(allg)) if allg[g][0] == si]
            per = -(-len(early) // len(gids))
            for n, g in enumerate(gids):
                _, _, pcs, rds, s0 = allg[g]
                e.wait_vm(dma_last[g])
                for (areg_, off, dst) in rds:
                    e(f"ds_read_b128 {vr(dst)}, v{areg_} offset:{s0*1024 + off}")
                for m in early[n*per:(n+1)*per]:
                    e(m)
                if n > 0:
                    freed = pend[g - 1]
                    if nissued < len(allg) and pend[nissued] <= freed + 32:
                        e(f"s_waitcnt lgkmcnt({len(rds)})")
                        while nissued < len(allg) and pend[nissued] <= freed + 32:
                            issue_group(nissued); nissued += 1
            e("s_waitcnt lgkmcnt(0)")
            freed = pend[gids[-1]]
            while nissued < len(allg) and pend[nissued] <= freed + 32:
                issue_group(nissued); nissued += 1
            if late:
                e.wait_vm(direct_last[si - 1])
                for m in late: e(m)
            if si + 1 < len(stages):
                issue_direct(si + 1)
        else:
            for m in early: e(m)
            if late:
                e.wait_vm(direct_last[si - 1])
                for m in late: e(m)
        if si == 4: stamp(e, 2)
    stamp(e, 3)
    e("s_barrier")
    e("v_lshlrev_b32 v4, 4, v3")
    e(f"v_mul_u32_u24 v40, {PM_PITCH}, v2")
    e("v_lshl_add_u32 v40, v3, 4, v40")
    e(f"s_mul_i32 s63, s21, {PM_WAVE}")
    e("v_add_u32 v40, s63, v40")
    e("s_and_b32 s59, s20, 7")
    e("s_cmp_eq_u32 s59, 0")
    e("s_cselect_b64 s[58:59], 0xffff, 0")
    e("v_mov_b32 v39, 0")
    for qa in range(3):
        for qb in range(3):
            T0 = 64 + 12 * ((3 * qa + qb) % 4)
            for r in range(4):
                e(f"v_accvgpr_read_b32 v{T0+r}, a{cacc(qa,qb)+r}")
                e(f"v_accvgpr_read_b32 v{T0+4+r}, a{sacc(qa,qb)+r}")
            if qa == 0:
                e(f"v_cndmask_b32 v{T0+4}, v{T0+4}, v39, s[58:59]")
            for r in range(4):
                e(f"v_add_f32 v{T0+8+r}, v{T0+r}, v{T0+4+r}")
                e(f"v_sub_f32 v{T0+4+r}, v{T0+r}, v{T0+4+r}")
            off = PMBASE + 16 * qb * PM_PITCH + 64 * qa
            e(f"ds_write_b128 v40, {vr(T0+8)} offset:{off}")
            e(f"ds_write_b128 v40, {vr(T0+4)} offset:{off+PM_MAT}")
    e("v_lshlrev_b32 v41, 4, v0")
    e(f"v_add_u32 v41, {ZXBASE}, v41")
    for w in range(4):
        e(f"s_cmp_lg_u32 s21, {w}")
        e(f"s_cbranch_scc1 KB_ZW_{w}")
        for d in range(4):
            if d == w: continue
            si = (w - d - 1) % 4
            for tl in range(4):
                q = 2 * (d & 1) + (tl & 1); tq = 2 * (d >> 1) + (tl >> 1)
                T0 = 112 + 4 * tl
                for r in range(4):
                    e(f"v_accvgpr_read_b32 v{T0+r}, a{zacc(q,tq)+r}")
                e(f"ds_write_b128 v41, {vr(T0)} offset:{(d*3+si)*4096 + tl*1024}")
        for tl in range(4):
            q = 2 * (w & 1) + (tl & 1); tq = 2 * (w >> 1) + (tl >> 1)
            for r in range(4):
                e(f"v_accvgpr_read_b32 v{128+4*tl+r}, a{zacc(q,tq)+r}")
        e.label(f"KB_ZW_{w}")
    e("s_and_b32 s64, s21, 1")
    e("s_lshr_b32 s65, s21, 1")
    e("s_cmp_eq_u32 s64, 0")
    e("s_cselect_b32 s66, s53, s55")
    e("s_cmp_eq_u32 s65, 0")
    e("s_cselect_b32 s67, s52, s54")
    e("v_add_u32 v42, s67, v2")
    e("v_lshlrev_b32 v42, 10, v42")
    e("v_lshl_add_u32 v42, v3, 4, v42")
    e("s_lshl_b32 s66, s66, 1")
    e("v_add_u32 v42, s66, v42")
    e(f"buffer_load_dwordx4 v[144:147], v42, {sr(SX)}, 0 offen")
    e("v_add_u32 v43, 0x4000, v42")
    e(f"buffer_load_dwordx4 v[148:151], v43, {sr(SX)}, 0 offen")
    e("s_waitcnt lgkmcnt(0)")
    e("s_barrier")
    e("s_mul_i32 s63, s21, 12288")
    e("v_add_u32 v41, s63, v41")
    for si in range(3):
        for tl in range(4):
            e(f"ds_read_b128 {vr(64+16*si+4*tl)}, v41 offset:{si*4096 + tl*1024}")
    e("s_waitcnt lgkmcnt(0)")
    for tl in range(4):
        for r in range(4):
            e(f"v_add_f32 v{128+4*tl+r}, v{128+4*tl+r}, v{64+4*tl+r}")
            e(f"v_add_f32 v{80+4*tl+r}, v{80+4*tl+r}, v{96+4*tl+r}")
            e(f"v_add_f32 v{128+4*tl+r}, v{128+4*tl+r}, v{80+4*tl+r}")
    e("s_xor_b32 s63, s64, s65")
    e(f"s_mul_i32 s63, s63, {PM_MAT}")
    e("v_lshlrev_b32 v44, 3, v3")
    e("v_sub_u32 v45, 25, v44")
    e("s_cmp_eq_u32 s64, 0")
    e("s_cselect_b64 vcc, -1, 0")
    e("v_cndmask_b32 v44, v45, v44, vcc")
    e("v_sub_u32 v45, 32, v2")
    e("s_cmp_eq_u32 s65, 0")
    e("s_cselect_b64 vcc, -1, 0")
    e("v_cndmask_b32 v45, v45, v2, vcc")
    e(f"v_mul_u32_u24 v45, {PM_PITCH}, v45")
    e("v_lshl_add_u32 v44, v44, 2, v45")
    e("v_add_u32 v44, s63, v44")
    e(f"s_cmp_eq_u32 s65, 0")
    e(f"s_mov_b32 s68, {16*PM_PITCH}")
    e(f"s_mov_b32 s69, {-16*PM_PITCH}")
    e("s_cselect_b32 s63, s68, s69")
    e("v_add_u32 v45, s63, v44")
    for tq in range(2):
        for pw in range(4):
            for k in range(8):
                e(f"ds_read_b32 v{64 + 32*tq + 8*pw + k}, v{44+tq} offset:{PMBASE + pw*PM_WAVE + 4*k}")
        e("s_waitcnt lgkmcnt(0)")
        for k in range(8):
            b = 64 + 32 * tq
            e(f"v_add_f32 v{b+k}, v{b+k}, v{b+8+k}")
            e(f"v_add_f32 v{b+16+k}, v{b+16+k}, v{b+24+k}")
            e(f"v_add_f32 v{b+k}, v{b+k}, v{b+16+k}")
    e("s_waitcnt vmcnt(0)")
    for wc in range(2):
        e(f"s_cmp_lg_u32 s64, {wc}")
        e(f"s_cbranch_scc1 KB_FIN_{wc}")
        for tq in range(2):
            for half in range(2):
                tl = half + 2 * tq
                for r in range(4):
                    k8 = 4 * half + r
                    yi = 64 + 32 * tq + (7 - k8 if wc else k8)
                    zr = 128 + 4 * tl + r
                    xr = 144 + 4 * tq + (k8 >> 1)
                    e(f"v_add_f32 v{zr}, v{zr}, v{yi}")
                    if k8 & 1:
                        e(f"v_and_b32 v46, 0xffff0000, v{xr}")
                    else:
                        e(f"v_lshlrev_b32 v46, 16, v{xr}")
                    e(f"v_add_f32 v{zr}, v{zr}, v46")
            for d in range(4):
                tl = (d >> 1) + 2 * tq
                z0 = 128 + 4 * tl + 2 * (d & 1)
                e(f"v_cvt_pk_bf16_f32 v{152+4*tq+d}, v{z0}, v{z0+1}")
        e.label(f"KB_FIN_{wc}")
    e("s_nop 1")
    e(f"buffer_store_dwordx4 v[152:155], v42, {sr(SO)}, 0 offen")
    e(f"buffer_store_dwordx4 v[156:159], v43, {sr(SO)}, 0 offen")
    if PROF:
        e("s_waitcnt vmcnt(0)")
    stamp(e, 4)
    stamps_out(e, 1, 5, 16, 17)
    e.label("KB_END")
    e("s_endpgm")
    return e.text(), 256 + NACC

HEADER = open("parallel_sum__spectral_fnet__dense_activation_relu__prompt.s.ref").read().split("; Override launch")[0]

def main(out):
    ka, ka_v = gen_ka()
    kb, kb_v = gen_kb()
    t = HEADER
    t += f"; @launch kernel=fnet_ka_kernel grid=(256,1,1) block=(256,1,1) lds={KA_LDS}\n"
    t += f"; @launch kernel=fnet_kb_kernel grid=(256,1,1) block=(256,1,1) lds={KB_LDS}\n"
    t += '.amdgcn_target "amdgcn-amd-amdhsa--gfx950"\n.text\n'
    for name, body in (("fnet_ka_kernel", ka), ("fnet_kb_kernel", kb)):
        t += f".globl {name}\n.p2align 8\n.type {name},@function\n" + body
    t += '.section .rodata,"a"\n'
    for name, nv in (("fnet_ka_kernel", ka_v), ("fnet_kb_kernel", kb_v)):
        t += f""".p2align 6
.amdhsa_kernel {name}
  .amdhsa_next_free_vgpr {nv}
  .amdhsa_next_free_sgpr 96
  .amdhsa_accum_offset 256
  .amdhsa_group_segment_fixed_size 0
  .amdhsa_kernarg_size 88
  .amdhsa_user_sgpr_count 2
  .amdhsa_user_sgpr_kernarg_segment_ptr 1
  .amdhsa_system_sgpr_workgroup_id_x 1
.end_amdhsa_kernel
"""
    open(out, "w").write(t)

if __name__ == "__main__":
    main(sys.argv[1] if len(sys.argv) > 1 else "parallel_sum__spectral_fnet__dense_activation_relu__prompt.s")
```

```python
import sys, os, re

S, D, F = 2048, 512, 1792
H_OFF, ABT_OFF, W2T_OFF = 0, 0x800000, 0xA00000
H_BYTES = S * F * 2
ABT_PITCH = 2176
ABT_BYTES = 512 * ABT_PITCH
W2T_BYTES = 512 * F * 2
OOB = 0x40000000
PROF = int(os.environ.get("PROF", "0"))
PROF_OFF = 0x4000000

class Emit:
    def __init__(self):
        self.lines = []
        self.nvm = 0
    def __call__(self, s=""):
        m = re.search(r"offset:(-?\d+)", s)
        if m:
            o = int(m.group(1))
            if s.lstrip().startswith("buffer_"): assert 0 <= o <= 4095, s
            if s.lstrip().startswith("ds_"): assert 0 <= o <= 65535, s
        self.lines.append("    " + s if s and not s.endswith(":") else s)
    def vm(self, s):
        if s.endswith(" lds") and self.lines and " m0," in self.lines[-1]:
            self("s_nop 0")
        self(s)
        self.nvm += 1
        return self.nvm - 1
    def wait_vm(self, idx):
        n = self.nvm - idx - 1
        if n <= 62:
            self(f"s_waitcnt vmcnt({n})")
    def label(self, s):
        self.lines.append(s + ":")
    def text(self):
        return "\n".join(self.lines) + "\n"

def stamp(e, k):
    if PROF:
        e(f"s_memtime s[{80+2*k}:{81+2*k}]")
        if k == 0: e("s_memrealtime s[92:93]")
        e("s_waitcnt lgkmcnt(0)")
def stamps_out(e, kidx, nst, wslo, wshi):
    if not PROF: return
    e("s_memrealtime s[94:95]")
    e("s_waitcnt lgkmcnt(0)")
    e(f"s_add_u32 s76, s{wslo}, {PROF_OFF}")
    e(f"s_addc_u32 s77, s{wshi}, 0")
    e("s_and_b32 s77, s77, 0xffff")
    e(f"s_mov_b32 s78, {2*256*4*64}")
    e("s_mov_b32 s79, 0x00020000")
    e(f"s_add_u32 s74, s2, {kidx*256}")
    e("s_lshl_b32 s74, s74, 2")
    e("s_add_u32 s74, s74, s21")
    e("s_lshl_b32 s74, s74, 6")
    e("s_mov_b64 s[70:71], exec")
    e("s_mov_b64 exec, 1")
    e("v_mov_b32 v200, 0")
    for k in range(nst):
        e(f"v_mov_b32 v202, s{80+2*k}")
        e(f"v_mov_b32 v203, s{81+2*k}")
        e(f"buffer_store_dwordx2 v[202:203], v200, s[76:79], s74 offen offset:{8*k}")
    for k in (6, 7):
        e(f"v_mov_b32 v202, s{80+2*k}")
        e(f"v_mov_b32 v203, s{81+2*k}")
        e(f"buffer_store_dwordx2 v[202:203], v200, s[76:79], s74 offen offset:{8*k}")
    e("s_mov_b64 exec, s[70:71]")

def vr(base, n=4): return f"v[{base}:{base+n-1}]"
def ar(base, n=4): return f"a[{base}:{base+n-1}]"
def sr(base, n=4): return f"s[{base}:{base+n-1}]"

def make_srd(e, dst, lo, hi, nbytes, add=0):
    if add:
        e(f"s_add_u32 s{dst}, s{lo}, {add}")
        e(f"s_addc_u32 s{dst+1}, s{hi}, 0")
    else:
        e(f"s_mov_b32 s{dst}, s{lo}")
        e(f"s_mov_b32 s{dst+1}, s{hi}")
    e(f"s_and_b32 s{dst+1}, s{dst+1}, 0xffff")
    e(f"s_mov_b32 s{dst+2}, {nbytes}")
    e(f"s_mov_b32 s{dst+3}, 0x00020000")

WPBASE = 0
WPPITCH = 1056
STG0 = 32 * WPPITCH
STGSZ = 30720
XOFF, W1OFF = 0, 16384
NSTG = 4
TBASE = STG0 + NSTG * STGSZ
KA_LDS = TBASE + 7168

def gen_ka():
    e = Emit()
    e.label("fnet_ka_kernel")
    e("s_cmp_ge_u32 s2, 256")
    e("s_cbranch_scc1 KA_END")
    e("s_load_dwordx2 s[4:5], s[0:1], 0")
    e("s_load_dwordx4 s[12:15], s[0:1], 48")
    e("s_load_dwordx4 s[8:11], s[0:1], 24")
    e("s_load_dwordx2 s[16:17], s[0:1], 80")
    e("s_and_b32 s3, s2, 7")
    e("s_lshr_b32 s18, s2, 3")
    e("s_and_b32 s19, s3, 3")
    e("s_lshl_b32 s19, s19, 2")
    e("s_and_b32 s20, s18, 3")
    e("s_add_u32 s19, s19, s20")
    e("s_lshr_b32 s20, s3, 2")
    e("s_lshl_b32 s20, s20, 3")
    e("s_lshr_b32 s21, s18, 2")
    e("s_add_u32 s20, s20, s21")
    e("v_lshrrev_b32 v1, 6, v0")
    e("v_and_b32 v0, 63, v0")
    e("v_and_b32 v2, 15, v0")
    e("v_readfirstlane_b32 s21, v1")
    e("v_lshrrev_b32 v3, 4, v0")
    SX, SW1, SWPA, SWPB, SW2, SH, SAB, SW2T = 24, 28, 32, 36, 40, 44, 48, 52
    e("s_mov_b32 s61, 3584")
    e("s_lshl_b32 s22, s19, 6")
    e("s_lshl_b32 s23, s21, 4")
    e("s_add_u32 s22, s22, s23")
    XV = 12
    e("v_lshrrev_b32 v20, 3, v0")
    e("v_lshrrev_b32 v21, 4, v0")
    e("v_and_b32 v22, 7, v0")
    e("v_mov_b32 v6, 0x400")
    for h in range(2):
        e(f"v_add_u32 v23, {8*h}, v20")
        e("v_add_u32 v23, s22, v23")
        e(f"v_xor_b32 v24, {4*h}, v21")
        e("v_xor_b32 v24, v22, v24")
        e("v_lshlrev_b32 v24, 4, v24")
        e(f"v_lshl_add_u32 v{XV+h}, v23, 10, v24")
        e("v_sub_u32 v25, 0x800, v23")
        e("v_cmp_eq_u32 vcc, 0, v23")
        e("s_nop 1")
        e("v_cndmask_b32 v25, v25, v6, vcc")
        e(f"v_lshl_add_u32 v{XV+2+h}, v25, 10, v24")
    W1V = 16
    e("s_mul_i32 s59, s20, 224")
    e("s_mov_b32 s60, 4682")
    e("s_and_b32 s62, s21, 1")
    e("s_add_u32 s62, s62, 12")
    for n in range(4):
        z, p, cc, k, t1, t2 = 28, 29, 30, 31, 32, 33
        if n < 3:
            e(f"s_add_u32 s63, s21, {4*n}")
        else:
            e("s_mov_b32 s63, s62")
        e("s_lshl_b32 s63, s63, 6")
        e(f"v_add_u32 v{z}, s63, v0")
        e(f"v_mul_lo_u32 v{p}, v{z}, s60")
        e(f"v_lshrrev_b32 v{p}, 16, v{p}")
        e(f"v_mul_u32_u24 v{cc}, 14, v{p}")
        e(f"v_sub_u32 v{cc}, v{z}, v{cc}")
        e(f"v_and_b32 v{k}, 0x33, v{p}")
        e(f"v_and_b32 v{t1}, 4, v{p}")
        e(f"v_lshlrev_b32 v{t1}, 1, v{t1}")
        e(f"v_and_b32 v{t2}, 8, v{p}")
        e(f"v_lshrrev_b32 v{t2}, 1, v{t2}")
        e(f"v_or3_b32 v{k}, v{k}, v{t1}, v{t2}")
        e(f"v_mul_lo_u32 v{k}, v{k}, s61")
        e(f"v_lshl_add_u32 v{k}, v{cc}, 4, v{k}")
        e(f"v_add_u32 v{W1V+n}, s59, v{k}")
    e("s_cmp_lt_u32 s21, 2")
    e("s_cselect_b64 s[68:69], -1, 1")
    e("s_lshl_b32 s72, s21, 12")
    e("s_lshl_b32 s73, s21, 10")
    e("s_lshl_b32 s67, s62, 10")
    e("s_lshr_b32 s75, s2, 3")
    e("s_waitcnt lgkmcnt(0)")
    stamp(e, 0)
    make_srd(e, SX, 4, 5, S * D * 2)
    make_srd(e, SW1, 12, 13, D * F * 2)
    stage_last = {}
    def stage_ops(st):
        buf = STG0 + (st % NSTG) * STGSZ
        ops = []
        def mk_x(t, h):
            def f():
                e(f"s_mov_b32 s63, {128*st}")
                e(f"s_add_u32 m0, s72, {buf + XOFF + (2*t+h)*1024}")
                e.vm(f"buffer_load_dwordx4 v{XV+2*t+h}, {sr(SX)}, s63 offen lds")
            return f
        def mk_w(n):
            def f():
                e(f"s_mov_b32 s63, {st*64*3584}")
                if n < 3:
                    e(f"s_add_u32 m0, s73, {buf + W1OFF + n*4096}")
                else:
                    e(f"s_add_u32 m0, s67, {buf + W1OFF}")
                    e("s_mov_b64 exec, s[68:69]")
                stage_last[st] = e.vm(f"buffer_load_dwordx4 v{W1V+n}, {sr(SW1)}, s63 offen lds")
                if n == 3:
                    e("s_mov_b64 exec, -1")
            return f
        for t in range(2):
            for h in range(2):
                ops.append(mk_x(t, h))
        for n in range(4):
            ops.append(mk_w(n))
        return ops
    def issue_stage(st):
        for f in stage_ops(st): f()
    pend_dma = []
    issue_stage(0)
    e("s_cmp_lt_u32 s20, 8")
    e(f"s_cselect_b32 s{SWPB}, s8, s10")
    e(f"s_cselect_b32 s{SWPB+1}, s9, s11")
    e(f"s_and_b32 s{SWPB+1}, s{SWPB+1}, 0xffff")
    e(f"s_mov_b32 s{SWPB+2}, {D*D*2}")
    e(f"s_mov_b32 s{SWPB+3}, 0x00020000")
    e("s_cmp_eq_u32 s21, 0")
    e("s_cselect_b32 s58, 9, 8")
    e("s_cmp_lt_u32 s20, s58")
    e(f"s_cselect_b32 s{SWPA}, s8, s10")
    e(f"s_cselect_b32 s{SWPA+1}, s9, s11")
    e(f"s_and_b32 s{SWPA+1}, s{SWPA+1}, 0xffff")
    e(f"s_mov_b32 s{SWPA+2}, {D*D*2}")
    e(f"s_mov_b32 s{SWPA+3}, 0x00020000")
    e("s_lshl_b32 s23, s20, 5")
    e("s_lshl_b32 s56, s21, 3")
    e("s_add_u32 s23, s23, s56")
    e("s_lshl_b32 s23, s23, 10")
    e("v_lshlrev_b32 v10, 4, v0")
    e(f"s_mul_i32 s57, s56, {WPPITCH}")
    e(f"s_add_u32 s57, s57, {WPBASE}")
    for rr in range(8):
        e(f"s_add_u32 m0, s57, {rr*WPPITCH}")
        e(f"s_add_u32 s58, s23, {rr*1024}")
        wp_last = e.vm(f"buffer_load_dwordx4 v10, {sr(SWPA if rr==0 else SWPB)}, s58 offen lds")
    issue_stage(1)
    stage_last[0] = wp_last
    make_srd(e, SW2, 14, 15, F * D * 2)
    e("v_lshrrev_b32 v26, 2, v0")
    e("v_and_b32 v27, 3, v0")
    e("v_lshlrev_b32 v27, 4, v27")
    e("v_lshl_add_u32 v26, v26, 10, v27")
    e("s_mul_i32 s64, s20, 112")
    e("s_lshl_b32 s65, s21, 4")
    e("s_add_u32 s64, s64, s65")
    e("s_lshl_b32 s64, s64, 10")
    e("s_lshl_b32 s65, s19, 6")
    e("s_add_u32 s64, s64, s65")
    w2box = {}
    def w2_issue():
        e(f"s_add_u32 m0, s73, {TBASE}")
        w2box[0] = e.vm(f"buffer_load_dwordx4 v26, {sr(SW2)}, s64 offen lds")
        e("s_cmp_eq_u32 s21, 3")
        e("s_cbranch_scc1 KA_NOW2")
        e(f"s_add_u32 m0, s73, {TBASE + 4096}")
        e(f"s_add_u32 s66, s64, {64*1024}")
        e("s_nop 0")
        e(f"buffer_load_dwordx4 v26, {sr(SW2)}, s66 offen lds")
        e.label("KA_NOW2")
    stamp(e, 1)
    make_srd(e, SH, 16, 17, H_BYTES, H_OFF)
    make_srd(e, SAB, 16, 17, ABT_BYTES, ABT_OFF)
    make_srd(e, SW2T, 16, 17, W2T_BYTES, W2T_OFF)
    ONES = 92
    for r in range(4):
        e(f"v_mov_b32 v{ONES+r}, 0x3f803f80")
    for a in range(52):
        e(f"v_accvgpr_write_b32 a{a}, 0")
    def csa(q): return 4 * q
    def sma(t): return 36 + 4 * t
    def sqa(t): return 44 + 4 * t
    e("v_add_u32 v4, s22, v2")
    e("v_sub_u32 v5, 0x800, v4")
    e("v_cmp_eq_u32 vcc, 0, v4")
    e("s_nop 1")
    e("v_cndmask_b32 v5, v5, v6, vcc")
    e("v_lshrrev_b32 v44, 1, v3")
    e("v_lshlrev_b32 v44, 4, v44")
    e("v_and_b32 v45, 1, v3")
    e("v_lshl_add_u32 v44, v45, 2, v44")
    e("v_lshrrev_b32 v45, 2, v2")
    e("v_add_u32 v44, v44, v45")
    e("v_mul_u32_u24 v44, 224, v44")
    e("v_and_b32 v45, 3, v0")
    e("v_lshl_add_u32 v44, v45, 3, v44")
    e("v_lshrrev_b32 v45, 1, v2")
    e("v_xor_b32 v45, v45, v3")
    e("v_lshlrev_b32 v45, 4, v45")
    e("v_lshl_add_u32 v45, v2, 7, v45")
    e("v_add_u32 v45, s72, v45")
    e("v_xor_b32 v43, 64, v45")
    e(f"v_mul_u32_u24 v46, {WPPITCH}, v2")
    e("v_lshl_add_u32 v46, v3, 4, v46")
    e(f"v_add_u32 v46, {WPBASE}, v46")
    ACC = 176
    for a in range(72):
        e(f"v_mov_b32 v{ACC+a}, 0")
    def acc(q, t): return ACC + (2 * q + t) * 4
    e("v_and_b32 v47, 1, v3")
    e("v_lshlrev_b32 v47, 3, v47")
    e("v_lshrrev_b32 v48, 2, v2")
    e("v_add_u32 v47, v47, v48")
    e("v_lshlrev_b32 v47, 6, v47")
    e("v_lshrrev_b32 v48, 1, v3")
    e("v_lshl_add_u32 v47, v48, 5, v47")
    e("v_and_b32 v48, 3, v0")
    e("v_lshl_add_u32 v47, v48, 3, v47")
    e("v_add_u32 v47, s73, v47")
    e(f"v_add_u32 v47, {TBASE}, v47")
    HA = (61, 64)
    e("s_mul_i32 s65, s20, 224")
    for t in range(2):
        e(f"v_mul_lo_u32 v{HA[t]}, v{4+t}, s61")
        e(f"v_lshl_add_u32 v{HA[t]}, v3, 3, v{HA[t]}")
        e(f"v_add_u32 v{HA[t]}, s65, v{HA[t]}")
    e("v_lshlrev_b32 v80, 4, v3")
    for r in range(4):
        e(f"v_add_u32 v{81+r}, {4*r}, v80")
    e("v_mov_b32 v62, 0")
    e("v_mov_b32 v63, 1.0")
    e("v_mov_b32 v68, -1.0")
    e("s_lshl_b32 s65, s20, 5")
    e("v_add_u32 v65, s65, v2")
    e(f"s_mov_b32 s66, {ABT_PITCH}")
    e("v_mul_lo_u32 v66, v65, s66")
    e("v_add_u32 v67, 0x800, v66")
    e("v_lshl_add_u32 v85, v3, 2, s22")
    e("v_lshl_add_u32 v66, v85, 1, v66")
    e("v_cmp_ne_u32 vcc, 0, v85")
    e("s_nop 1")
    e("v_cndmask_b32 v86, v62, v63, vcc")
    WF = 96; NSL = 10
    XFR = 136
    TRA, XA0, XA1 = 58, 59, 60
    LA = 8
    seq = []
    for st in range(8):
        for k2 in range(2):
            seq.append(("x", st, k2, 0)); seq.append(("x", st, k2, 1))
            for q in range(9):
                seq.append(("w", st, k2, q))
    def xreg(st, k2, t): return XFR + 8 * ((2 * st + k2) % 4) + 4 * t
    wslot = {}
    cnt = [0]
    def pre_stage(st):
        buf = STG0 + (st % NSTG) * STGSZ
        while st not in stage_last:
            pend_dma.pop(0)()
        e.wait_vm(stage_last[st])
        e("s_barrier")
        if st == 0: stamp(e, 2)
        if st == 0:
            pend_dma.extend(stage_ops(2)); pend_dma.extend(stage_ops(3))
        if 2 <= st and st + 2 < 8:
            pend_dma.extend(stage_ops(st + 2))
        if st == 6:
            pend_dma.append(w2_issue)
        e(f"v_add_u32 v{TRA}, {buf + W1OFF}, v44")
        e(f"v_add_u32 v{XA0}, {buf + XOFF}, v45")
        e(f"v_add_u32 v{XA1}, {buf + XOFF}, v43")
    def issue(m):
        kind, st, k2, q = seq[m]
        if kind == "x" and k2 == 0 and q == 0:
            pre_stage(st)
        if kind == "x":
            e(f"ds_read_b128 {vr(xreg(st,k2,q))}, v{XA0 if k2==0 else XA1} offset:{2048*q}")
            return
        sl = WF + 4 * (cnt[0] % NSL); cnt[0] += 1
        wslot[(st, k2, q)] = sl
        if q < 7:
            off = 7168 * k2 + 32 * q
            e(f"ds_read_b64_tr_b16 v[{sl}:{sl+1}], v{TRA} offset:{off}")
            e(f"ds_read_b64_tr_b16 v[{sl+2}:{sl+3}], v{TRA} offset:{off+1792}")
        else:
            e(f"ds_read_b128 {vr(sl)}, v46 offset:{16*WPPITCH*(q-7) + 64*(2*st+k2)}")
    nrd = [1 if (it[0] == "x" or it[3] >= 7) else 2 for it in seq]
    for n in range(LA):
        issue(n)
    for n, it in enumerate(seq):
        if n + LA < len(seq):
            issue(n + LA)
        out = sum(nrd[n + 1: min(len(seq), n + LA + 1)])
        kind, st, k2, q = it
        if kind == "x":
            continue
        e(f"s_waitcnt lgkmcnt({min(out,15)})")
        sl = wslot[(st, k2, q)]
        for t in range(2):
            if q < 7:
                e(f"v_mfma_f32_16x16x32_bf16 {vr(acc(q,t))}, {vr(sl)}, {vr(xreg(st,k2,t))}, {vr(acc(q,t))}")
            else:
                e(f"v_mfma_f32_16x16x32_bf16 {vr(acc(q,t))}, {vr(xreg(st,k2,t))}, {vr(sl)}, {vr(acc(q,t))}")
        if q < 7:
            e(f"v_mfma_f32_16x16x32_bf16 {ar(csa(q))}, {vr(sl)}, {vr(ONES)}, {ar(csa(q))}")
        else:
            e(f"v_mfma_f32_16x16x32_bf16 {ar(csa(q))}, {vr(ONES)}, {vr(sl)}, {ar(csa(q))}")
        if q in (1, 5):
            t_ = q >> 2
            e(f"v_mfma_f32_16x16x32_bf16 {ar(sma(t_))}, {vr(ONES)}, {vr(xreg(st,k2,t_))}, {ar(sma(t_))}")
        if q in (3, 7):
            t_ = q >> 2
            e(f"v_mfma_f32_16x16x32_bf16 {ar(sqa(t_))}, {vr(xreg(st,k2,t_))}, {vr(xreg(st,k2,t_))}, {ar(sqa(t_))}")
        if pend_dma and (q % 2 == 0 or len(pend_dma) > 6):
            pend_dma.pop(0)()
    assert not pend_dma
    stamp(e, 3)
    W2R = 50
    e.wait_vm(w2box[0])
    for n in range(2):
        for h in range(2):
            e(f"ds_read_b64_tr_b16 v[{W2R+4*n+2*h}:{W2R+1+4*n+2*h}], v47 offset:{4096*n + 256*h}")
    SUM, SQ = 42, 44
    e("v_and_b32 v96, 3, v2")
    e("v_lshrrev_b32 v97, 2, v2")
    e("v_lshl_add_u32 v97, v97, 4, v2")
    e("v_lshlrev_b32 v97, 2, v97")
    for t in range(2):
        e(f"v_accvgpr_read_b32 v{SUM+t}, a{sma(t)}")
        for r in range(4):
            e(f"v_accvgpr_read_b32 v{100+4*t+r}, a{sqa(t)+r}")
    for r in range(1, 4):
        e(f"v_cmp_eq_u32 vcc, {r}, v96")
        e("s_nop 1")
        for t in range(2):
            e(f"v_cndmask_b32 v{100+4*t}, v{100+4*t}, v{100+4*t+r}, vcc")
    for t in range(2):
        e(f"ds_bpermute_b32 v{SQ+t}, v97, v{100+4*t}")
    CSV = 116
    for q in range(9):
        for r in range(4):
            e(f"v_accvgpr_read_b32 v{CSV+4*q+r}, a{csa(q)+r}")
    e("s_waitcnt lgkmcnt(0)")
    e("v_lshrrev_b32 v48, 1, v3")
    e("v_lshl_add_u32 v48, v48, 4, v2")
    e("s_lshl_b32 s65, s19, 5")
    e("v_add_u32 v48, s65, v48")
    e("v_mul_lo_u32 v48, v48, s61")
    e("v_and_b32 v49, 1, v3")
    e("v_lshl_add_u32 v48, v49, 4, v48")
    e("s_mul_i32 s65, s20, 224")
    e("s_lshl_b32 s66, s21, 5")
    e("s_add_u32 s65, s65, s66")
    e("v_add_u32 v48, s65, v48")
    e(f"buffer_store_dwordx4 v[{W2R}:{W2R+3}], v48, {sr(SW2T)}, 0 offen")
    e("s_cmp_eq_u32 s21, 3")
    e("s_cbranch_scc1 KA_NOT2")
    e(f"buffer_store_dwordx4 v[{W2R+4}:{W2R+7}], v48, {sr(SW2T)}, 0 offen offset:128")
    e.label("KA_NOT2")
    NM, RP = 104, 108
    MB = 112
    e("s_mov_b32 s67, 0x3b000000")
    e("s_mov_b32 s68, 0x3727c5ac")
    for t in range(2):
        a, b = 96 + t, 98 + t
        e(f"v_mul_f32 v{a}, s67, v{SUM+t}")
        e(f"v_mul_f32 v{b}, s67, v{SQ+t}")
        e(f"v_fma_f32 v{b}, -v{a}, v{a}, v{b}")
        e(f"v_max_f32 v{b}, 0, v{b}")
        e(f"v_cvt_pk_bf16_f32 v{MB+t}, v{a}, v{a}")
        e(f"v_lshlrev_b32 v{MB+t}, 16, v{MB+t}")
        e(f"v_cvt_pk_bf16_f32 v{b}, v{b}, v{b}")
        e(f"v_lshlrev_b32 v{b}, 16, v{b}")
        e(f"v_add_f32 v{b}, s68, v{b}")
        e(f"v_cvt_pk_bf16_f32 v{b}, v{b}, v{b}")
        e(f"v_lshlrev_b32 v{b}, 16, v{b}")
        e(f"v_sqrt_f32 v{b}, v{b}")
        e("s_nop 0")
        e(f"v_cvt_pk_bf16_f32 v{b}, v{b}, v{b}")
        e(f"v_lshlrev_b32 v{b}, 16, v{b}")
        e(f"v_rcp_f32 v{RP+2*t}, v{b}")
        e("s_nop 0")
        e(f"v_mov_b32 v{RP+2*t+1}, v{RP+2*t}")
        e(f"v_sub_f32 v{NM+2*t}, 0, v{MB+t}")
        e(f"v_sub_f32 v{NM+2*t+1}, 0, v{MB+t}")
    MT, RT = 152, 160
    for t in range(2):
        for r in range(4):
            e(f"ds_bpermute_b32 v{MT+4*t+r}, v{81+r}, v{MB+t}")
            e(f"ds_bpermute_b32 v{RT+4*t+r}, v{81+r}, v{RP+2*t}")
    stamp(e, 4)
    for q in range(7):
        for t in range(2):
            A = acc(q, t)
            for h in range(2):
                e(f"v_pk_fma_f32 v[{A+2*h}:{A+2*h+1}], v[{CSV+4*q+2*h}:{CSV+4*q+2*h+1}], v[{NM+2*t}:{NM+2*t+1}], v[{A+2*h}:{A+2*h+1}]")
            for h in range(2):
                e(f"v_pk_mul_f32 v[{A+2*h}:{A+2*h+1}], v[{A+2*h}:{A+2*h+1}], v[{RP+2*t}:{RP+2*t+1}]")
            e(f"v_cvt_pk_bf16_f32 v{A}, v{A}, v{A+1}")
            e(f"v_cvt_pk_bf16_f32 v{A+1}, v{A+2}, v{A+3}")
            e(f"v_pk_max_i16 v{A}, v{A}, 0")
            e(f"v_pk_max_i16 v{A+1}, v{A+1}, 0")
            e(f"buffer_store_dwordx2 v[{A}:{A+1}], v{HA[t]}, {sr(SH)}, 0 offen offset:{32*q}")
    e(f"s_mov_b32 s72, {16*ABT_PITCH}")
    e("s_waitcnt lgkmcnt(0)")
    for q in range(7, 9):
        A0, A1, SG = acc(q, 0), acc(q, 1), 168
        e(f"v_add_u32 v{SG}, {16*(q-7)}, v65")
        e(f"v_cmp_gt_u32 vcc, 0x101, v{SG}")
        e("s_nop 1")
        e(f"v_cndmask_b32 v{SG}, v68, v63, vcc")
        e(f"v_mul_f32 v{SG+1}, v{SG}, v86")
        for r in range(4):
            e(f"v_fma_f32 v{A0+r}, -v{MT+r}, v{CSV+4*q}, v{A0+r}")
            e(f"v_fma_f32 v{A1+r}, -v{MT+4+r}, v{CSV+4*q}, v{A1+r}")
        for r in range(4):
            e(f"v_mul_f32 v{A0+r}, v{RT+r}, v{A0+r}")
            e(f"v_mul_f32 v{A1+r}, v{RT+4+r}, v{A1+r}")
        for r in range(4):
            e(f"v_fma_f32 v{A0+r}, v{SG+(1 if r==0 else 0)}, v{A1+r}, v{A0+r}")
        e(f"v_cvt_pk_bf16_f32 v{SG+2}, v{A0}, v{A0+1}")
        e(f"v_cvt_pk_bf16_f32 v{SG+3}, v{A0+2}, v{A0+3}")
        so = "0" if q == 7 else "s72"
        e(f"buffer_store_dwordx2 v[{SG+2}:{SG+3}], v66, {sr(SAB)}, {so} offen")
        e("s_cmp_lg_u32 s22, 0")
        e(f"s_cbranch_scc1 KA_S0_{q}")
        e(f"v_cvt_pk_bf16_f32 v{SG+4}, v{A1}, v62")
        e("s_mov_b64 s[70:71], exec")
        e("s_mov_b64 exec, 0xffff")
        e(f"buffer_store_dword v{SG+4}, v67, {sr(SAB)}, {so} offen")
        e("s_mov_b64 exec, s[70:71]")
        e.label(f"KA_S0_{q}")
    if PROF:
        e("s_waitcnt vmcnt(0)")
    stamp(e, 5)
    stamps_out(e, 0, 6, 16, 17)
    e("s_cmp_lg_u32 s19, 0")
    e("s_cbranch_scc1 KA_END")
    e("s_cmp_lg_u32 s21, 1")
    e("s_cbranch_scc1 KA_END")
    e("s_lshl_b32 s65, s20, 5")
    e("v_add_u32 v65, s65, v0")
    e(f"s_mov_b32 s66, {ABT_PITCH}")
    e("v_mul_lo_u32 v66, v65, s66")
    e("v_add_u32 v66, 2052, v66")
    e("v_cmp_gt_u32 vcc, 32, v0")
    e("s_and_saveexec_b64 s[70:71], vcc")
    for d in range(15):
        e(f"buffer_store_dword v62, v66, {sr(SAB)}, 0 offen offset:{4*d}")
    e("s_mov_b64 exec, s[70:71]")
    e.label("KA_END")
    e("s_endpgm")
    return e.text(), 256 + 52

PM_PITCH = 52 * 4
PM_MAT = 48 * PM_PITCH
PM_WAVE = 2 * PM_MAT
PMBASE = 0
ZXBASE = 4 * PM_WAVE
RINGW = 32768
KB_LDS = max(ZXBASE + 4 * 3 * 4096, 4 * RINGW)

def gen_kb():
    e = Emit()
    e.label("fnet_kb_kernel")
    e("s_cmp_ge_u32 s2, 256")
    e("s_cbranch_scc1 KB_END")
    e("s_load_dwordx2 s[4:5], s[0:1], 0")
    e("s_load_dwordx4 s[8:11], s[0:1], 8")
    e("s_load_dwordx2 s[12:13], s[0:1], 64")
    e("s_load_dwordx2 s[16:17], s[0:1], 80")
    e("s_and_b32 s3, s2, 7")
    e("s_lshr_b32 s18, s2, 3")
    e("s_and_b32 s19, s3, 3")
    e("s_lshl_b32 s19, s19, 3")
    e("s_and_b32 s20, s18, 7")
    e("s_add_u32 s19, s19, s20")
    e("s_lshr_b32 s20, s3, 2")
    e("s_lshl_b32 s20, s20, 2")
    e("s_lshr_b32 s21, s18, 3")
    e("s_add_u32 s20, s20, s21")
    e("v_lshrrev_b32 v1, 6, v0")
    e("v_and_b32 v0, 63, v0")
    e("v_and_b32 v2, 15, v0")
    e("v_readfirstlane_b32 s21, v1")
    e("v_lshrrev_b32 v3, 4, v0")
    e("s_waitcnt lgkmcnt(0)")
    stamp(e, 0)
    SX, SO, SH, SW2T, SAB, SWR, SWI = 24, 28, 32, 36, 40, 44, 48
    make_srd(e, SX, 4, 5, S * D * 2)
    make_srd(e, SO, 12, 13, S * D * 2)
    make_srd(e, SH, 16, 17, H_BYTES, H_OFF)
    make_srd(e, SW2T, 16, 17, W2T_BYTES, W2T_OFF)
    make_srd(e, SAB, 16, 17, ABT_BYTES, ABT_OFF)
    make_srd(e, SWR, 8, 9, S * S * 2)
    make_srd(e, SWI, 10, 11, S * S * 2)
    e("s_mov_b32 s61, 3584")
    e(f"s_mov_b32 s62, {ABT_PITCH}")
    e("s_lshl_b32 s52, s19, 5")
    e("s_lshl_b32 s53, s20, 5")
    e("s_sub_u32 s54, 2016, s52")
    e("s_sub_u32 s55, 480, s53")
    e("s_mul_i32 s56, s21, 896")
    e("s_lshl_b32 s57, s21, 9")
    e("v_lshlrev_b32 v4, 4, v3")
    e(f"v_mov_b32 v8, {OOB}")
    e("s_cmp_eq_u32 s21, 3")
    e("s_cselect_b32 s58, 33, 0")
    SETR = [64, 160]
    XR = SETR[1]
    for qa in range(3):
        e(f"v_add_u32 v7, {16*qa}, v2")
        e("v_add_u32 v9, s53, v7")
        e("v_mul_lo_u32 v36, v9, s62")
        e("v_add_u32 v38, 0x800, v36")
        e("v_add_u32 v38, v38, v4")
        e("v_cmp_gt_u32 vcc, s58, v7")
        e("s_nop 1")
        e(f"v_cndmask_b32 v{30+qa}, v8, v38, vcc")
        e("v_add_u32 v9, s52, v7")
        e("v_lshlrev_b32 v36, 12, v9")
        e("v_add_u32 v38, 0x800, v36")
        e("v_add_u32 v38, v38, v4")
        e(f"v_cndmask_b32 v{33+qa}, v8, v38, vcc")
    xops = []
    for qa in range(3):
        xops.append(e.vm(f"buffer_load_dwordx4 {vr(XR+4*qa)}, v{30+qa}, {sr(SAB)}, 0 offen"))
    for qa in range(3):
        xops.append(e.vm(f"buffer_load_dwordx4 {vr(XR+12+4*qa)}, v{33+qa}, {sr(SWR)}, 0 offen"))
    e("v_lshrrev_b32 v20, 3, v0")
    e("v_lshrrev_b32 v21, 4, v0")
    e("v_and_b32 v22, 7, v0")
    PA, PH, PW, PB, PBR = 10, 14, 16, 18, 36
    for pi in range(4):
        e("v_and_b32 v23, 1, v21")
        e(f"v_or_b32 v23, {pi<<1}, v23")
        e("v_xor_b32 v23, v22, v23")
        e(f"v_add_u32 v24, {8*pi}, v20")
        e("v_mul_lo_u32 v24, v24, s61")
        e(f"v_lshl_add_u32 v{PA+pi}, v23, 4, v24")
    for h in range(2):
        e(f"v_xor_b32 v23, {4*h}, v21")
        e("v_xor_b32 v23, v22, v23")
        e("v_lshlrev_b32 v23, 4, v23")
        e(f"v_add_u32 v24, {8*h}, v20")
        e("v_mul_lo_u32 v25, v24, s61")
        e(f"v_add_u32 v{PH+h}, v25, v23")
        e(f"v_lshl_add_u32 v{PW+h}, v24, 12, v23")
        e("v_mul_lo_u32 v25, v24, s62")
        e(f"v_add_u32 v{PB+h}, v25, v23")
        e("v_sub_u32 v24, 15, v24")
        e("v_mul_lo_u32 v25, v24, s62")
        e(f"v_add_u32 v{PBR+h}, v25, v23")
    e("s_mul_i32 s64, s53, s61"); e("s_add_u32 s64, s64, s56")
    e("s_mul_i32 s65, s55, s61"); e("s_add_u32 s65, s65, s56")
    e("s_mul_i32 s66, s52, s61"); e("s_add_u32 s66, s66, s56")
    e(f"s_add_u32 s67, s66, {16*3584}")
    e("s_mul_i32 s68, s54, s61"); e("s_add_u32 s68, s68, s56")
    e(f"s_add_u32 s69, s68, {16*3584}")
    e("s_lshl_b32 s70, s52, 12"); e("s_add_u32 s70, s70, s57")
    e(f"s_add_u32 s71, s70, {16*4096}")
    e("s_mul_i32 s72, s53, s62"); e("s_add_u32 s72, s72, s57")
    e(f"s_add_u32 s73, s72, {16*ABT_PITCH}")
    e("s_sub_u32 s74, 497, s53"); e("s_mul_i32 s74, s74, s62"); e("s_add_u32 s74, s74, s57")
    e(f"s_sub_u32 s75, s74, {16*ABT_PITCH}")
    e("v_add_u32 v23, s57, v4")
    e("s_add_u32 s59, s53, 32")
    e("s_mul_i32 s60, s59, s62")
    e("v_add_u32 v26, s60, v23")
    e("s_sub_u32 s60, 512, s59")
    e("s_mul_i32 s60, s60, s62")
    e("s_cmp_eq_u32 s59, 256")
    e(f"s_cselect_b32 s60, {OOB}, s60")
    e("v_add_u32 v27, s60, v23")
    e("s_add_u32 s59, s52, 32")
    e("s_lshl_b32 s59, s59, 12")
    e("v_add_u32 v28, s59, v23")
    e("s_lshl_b32 s63, s21, 15")
    RS0, RS1, RA0, RA1 = 40, 41, 42, 43
    e("v_lshrrev_b32 v23, 1, v2")
    e("v_xor_b32 v23, v23, v3")
    e("v_lshlrev_b32 v23, 4, v23")
    e("v_lshl_add_u32 v23, v2, 7, v23")
    e(f"v_add_u32 v{RS0}, s63, v23")
    e(f"v_xor_b32 v{RS1}, 64, v{RS0}")
    e("v_lshrrev_b32 v23, 2, v2")
    e("v_and_b32 v24, 3, v2")
    e("v_lshl_add_u32 v25, v23, 3, v24")
    e("v_lshrrev_b32 v24, 1, v24")
    e("v_lshl_add_u32 v24, v23, 1, v24")
    e("v_xor_b32 v24, v24, v3")
    e("v_lshlrev_b32 v24, 4, v24")
    e("v_lshl_add_u32 v24, v25, 7, v24")
    e(f"v_add_u32 v{RA0}, s63, v24")
    e(f"v_xor_b32 v{RA1}, 64, v{RA0}")
    NACC = 136
    def zacc(q, tq): return (4 * q + tq) * 4
    def cacc(qa, qb): return 64 + (3 * qa + qb) * 4
    def sacc(qa, qb): return 100 + (3 * qa + qb) * 4
    stages = [("D", k) for k in range(4)] + [("Z", k) for k in range(7)]
    def groups_of(si):
        kind, k = stages[si]
        R = SETR[si % 2]
        gl = []
        if kind == "Z":
            for b in range(2):
                pcs = [(SW2T, PA + pi, 64 + b) for pi in range(4)]
                rds = []
                for half in range(2):
                    for k2 in range(2):
                        rds.append((RA0 if k2 == 0 else RA1, 512 * half, R + 8 * (2 * b + half) + 4 * k2))
                gl.append((pcs, rds))
            for tq in range(4):
                pcs = [(SH, PH + h, 66 + tq) for h in range(2)]
                rds = [(RS0, 0, R + 32 + 8 * tq), (RS1, 0, R + 32 + 8 * tq + 4)]
                gl.append((pcs, rds))
        else:
            specs = [(SAB, PB, 72), (SAB, PB, 73), (SWR, PW, 70), (SWR, PW, 71), (SAB, PBR, 74), (SAB, PBR, 75), (SWI, PW, 70), (SWI, PW, 71)]
            for gi, (srd, pv, sb) in enumerate(specs):
                pcs = [(srd, pv + h, sb) for h in range(2)]
                rds = [(RS0, 0, R + 8 * gi), (RS1, 0, R + 8 * gi + 4)]
                gl.append((pcs, rds))
        return gl
    allg = []
    pend = []
    slot = 0
    for si in range(len(stages)):
        for gi, (pcs, rds) in enumerate(groups_of(si)):
            allg.append((si, gi, pcs, rds, slot % 32)); slot += len(pcs); pend.append(slot)
    dma_last = {}
    def issue_group(gidx):
        si, gi, pcs, rds, s0 = allg[gidx]
        kind, k = stages[si]
        for pn, (srd, pv, sb) in enumerate(pcs):
            e(f"s_add_u32 m0, s63, {(s0+pn)*1024}")
            if pn == 0:
                e(f"s_add_u32 s76, s{sb}, {128*k}")
            dma_last[gidx] = e.vm(f"buffer_load_dwordx4 v{pv}, {sr(srd)}, s76 offen lds")
    direct_last = {}
    def issue_direct(si):
        kind, k = stages[si]
        if kind != "D": return
        R = SETR[si % 2] + 64
        for mi, (srd, vo) in enumerate([(SAB, 26), (SWR, 28), (SAB, 27), (SWI, 28)]):
            for k2 in range(2):
                direct_last[si] = e.vm(f"buffer_load_dwordx4 {vr(R+8*mi+4*k2)}, v{vo}, {sr(srd)}, 0 offen offset:{128*k+64*k2}")
    def mfmas(si):
        if si < 0:
            return [f"v_mfma_f32_16x16x32_bf16 {ar(cacc(qa,qb))}, {vr(XR+4*qa)}, {vr(XR+12+4*qb)}, {ar(cacc(qa,qb))}" for qa in range(3) for qb in range(3)], []
        kind, k = stages[si]
        R = SETR[si % 2]
        early, late = [], []
        if kind == "Z":
            for k2 in range(2):
                for q in range(4):
                    for tq in range(4):
                        early.append(f"v_mfma_f32_16x16x32_bf16 {ar(zacc(q,tq))}, {vr(R+8*q+4*k2)}, {vr(R+32+8*tq+4*k2)}, {ar(zacc(q,tq))}")
        else:
            def areg(mat, q, k2):
                return (R + 32 * mat + 8 * q + 4 * k2) if q < 2 else (R + 64 + 16 * mat + 4 * k2)
            def breg(mat, q, k2):
                return (R + 32 * mat + 16 + 8 * q + 4 * k2) if q < 2 else (R + 64 + 16 * mat + 8 + 4 * k2)
            for k2 in range(2):
                for mat in range(2):
                    fa = cacc if mat == 0 else sacc
                    for qa in range(3):
                        for qb in range(3):
                            s = f"v_mfma_f32_16x16x32_bf16 {ar(fa(qa,qb))}, {vr(areg(mat,qa,k2))}, {vr(breg(mat,qb,k2))}, {ar(fa(qa,qb))}"
                            (late if (qa == 2 or qb == 2) else early).append(s)
        return early, late
    gstart = {}
    for gidx, g in enumerate(allg):
        gstart.setdefault(g[0], gidx)
    nissued = 0
    pieces_issued = 0
    while nissued < len(allg) and pieces_issued + len(allg[nissued][2]) <= 32:
        issue_group(nissued); pieces_issued += len(allg[nissued][2]); nissued += 1
    issue_direct(0)
    for a in range(NACC):
        e(f"v_accvgpr_write_b32 a{a}, 0")
    stamp(e, 1)
    freed_q = []
    for si in range(len(stages) + 1):
        early, late = mfmas(si - 1)
        if si == 0:
            e.wait_vm(xops[-1])
        if si < len(stages):
            gids = [g for g in range(len(allg)) if allg[g][0] == si]
            per = -(-len(early) // len(gids))
            for n, g in enumerate(gids):
                _, _, pcs, rds, s0 = allg[g]
                e.wait_vm(dma_last[g])
                for (areg_, off, dst) in rds:
                    e(f"ds_read_b128 {vr(dst)}, v{areg_} offset:{s0*1024 + off}")
                for m in early[n*per:(n+1)*per]:
                    e(m)
                if n > 0:
                    freed = pend[g - 1]
                    if nissued < len(allg) and pend[nissued] <= freed + 32:
                        e(f"s_waitcnt lgkmcnt({len(rds)})")
                        while nissued < len(allg) and pend[nissued] <= freed + 32:
                            issue_group(nissued); nissued += 1
            e("s_waitcnt lgkmcnt(0)")
            freed = pend[gids[-1]]
            while nissued < len(allg) and pend[nissued] <= freed + 32:
                issue_group(nissued); nissued += 1
            if late:
                e.wait_vm(direct_last[si - 1])
                for m in late: e(m)
            if si + 1 < len(stages):
                issue_direct(si + 1)
        else:
            for m in early: e(m)
            if late:
                e.wait_vm(direct_last[si - 1])
                for m in late: e(m)
        if si == 4: stamp(e, 2)
    stamp(e, 3)
    e("s_barrier")
    e("v_lshlrev_b32 v4, 4, v3")
    e(f"v_mul_u32_u24 v40, {PM_PITCH}, v2")
    e("v_lshl_add_u32 v40, v3, 4, v40")
    e(f"s_mul_i32 s63, s21, {PM_WAVE}")
    e("v_add_u32 v40, s63, v40")
    e("s_and_b32 s59, s20, 7")
    e("s_cmp_eq_u32 s59, 0")
    e("s_cselect_b64 s[58:59], 0xffff, 0")
    e("v_mov_b32 v39, 0")
    for qa in range(3):
        for qb in range(3):
            T0 = 64 + 12 * ((3 * qa + qb) % 4)
            for r in range(4):
                e(f"v_accvgpr_read_b32 v{T0+r}, a{cacc(qa,qb)+r}")
                e(f"v_accvgpr_read_b32 v{T0+4+r}, a{sacc(qa,qb)+r}")
            if qa == 0:
                e(f"v_cndmask_b32 v{T0+4}, v{T0+4}, v39, s[58:59]")
            for r in range(4):
                e(f"v_add_f32 v{T0+8+r}, v{T0+r}, v{T0+4+r}")
                e(f"v_sub_f32 v{T0+4+r}, v{T0+r}, v{T0+4+r}")
            off = PMBASE + 16 * qb * PM_PITCH + 64 * qa
            e(f"ds_write_b128 v40, {vr(T0+8)} offset:{off}")
            e(f"ds_write_b128 v40, {vr(T0+4)} offset:{off+PM_MAT}")
    e("v_lshlrev_b32 v41, 4, v0")
    e(f"v_add_u32 v41, {ZXBASE}, v41")
    for w in range(4):
        e(f"s_cmp_lg_u32 s21, {w}")
        e(f"s_cbranch_scc1 KB_ZW_{w}")
        for d in range(4):
            if d == w: continue
            si = (w - d - 1) % 4
            for tl in range(4):
                q = 2 * (d & 1) + (tl & 1); tq = 2 * (d >> 1) + (tl >> 1)
                T0 = 112 + 4 * tl
                for r in range(4):
                    e(f"v_accvgpr_read_b32 v{T0+r}, a{zacc(q,tq)+r}")
                e(f"ds_write_b128 v41, {vr(T0)} offset:{(d*3+si)*4096 + tl*1024}")
        for tl in range(4):
            q = 2 * (w & 1) + (tl & 1); tq = 2 * (w >> 1) + (tl >> 1)
            for r in range(4):
                e(f"v_accvgpr_read_b32 v{128+4*tl+r}, a{zacc(q,tq)+r}")
        e.label(f"KB_ZW_{w}")
    e("s_and_b32 s64, s21, 1")
    e("s_lshr_b32 s65, s21, 1")
    e("s_cmp_eq_u32 s64, 0")
    e("s_cselect_b32 s66, s53, s55")
    e("s_cmp_eq_u32 s65, 0")
    e("s_cselect_b32 s67, s52, s54")
    e("v_add_u32 v42, s67, v2")
    e("v_lshlrev_b32 v42, 10, v42")
    e("v_lshl_add_u32 v42, v3, 4, v42")
    e("s_lshl_b32 s66, s66, 1")
    e("v_add_u32 v42, s66, v42")
    e(f"buffer_load_dwordx4 v[144:147], v42, {sr(SX)}, 0 offen")
    e("v_add_u32 v43, 0x4000, v42")
    e(f"buffer_load_dwordx4 v[148:151], v43, {sr(SX)}, 0 offen")
    e("s_waitcnt lgkmcnt(0)")
    e("s_barrier")
    e("s_mul_i32 s63, s21, 12288")
    e("v_add_u32 v41, s63, v41")
    for si in range(3):
        for tl in range(4):
            e(f"ds_read_b128 {vr(64+16*si+4*tl)}, v41 offset:{si*4096 + tl*1024}")
    e("s_waitcnt lgkmcnt(0)")
    for tl in range(4):
        for r in range(4):
            e(f"v_add_f32 v{128+4*tl+r}, v{128+4*tl+r}, v{64+4*tl+r}")
            e(f"v_add_f32 v{80+4*tl+r}, v{80+4*tl+r}, v{96+4*tl+r}")
            e(f"v_add_f32 v{128+4*tl+r}, v{128+4*tl+r}, v{80+4*tl+r}")
    e("s_xor_b32 s63, s64, s65")
    e(f"s_mul_i32 s63, s63, {PM_MAT}")
    e("v_lshlrev_b32 v44, 3, v3")
    e("v_sub_u32 v45, 25, v44")
    e("s_cmp_eq_u32 s64, 0")
    e("s_cselect_b64 vcc, -1, 0")
    e("v_cndmask_b32 v44, v45, v44, vcc")
    e("v_sub_u32 v45, 32, v2")
    e("s_cmp_eq_u32 s65, 0")
    e("s_cselect_b64 vcc, -1, 0")
    e("v_cndmask_b32 v45, v45, v2, vcc")
    e(f"v_mul_u32_u24 v45, {PM_PITCH}, v45")
    e("v_lshl_add_u32 v44, v44, 2, v45")
    e("v_add_u32 v44, s63, v44")
    e(f"s_cmp_eq_u32 s65, 0")
    e(f"s_mov_b32 s68, {16*PM_PITCH}")
    e(f"s_mov_b32 s69, {-16*PM_PITCH}")
    e("s_cselect_b32 s63, s68, s69")
    e("v_add_u32 v45, s63, v44")
    for tq in range(2):
        for pw in range(4):
            for k in range(8):
                e(f"ds_read_b32 v{64 + 32*tq + 8*pw + k}, v{44+tq} offset:{PMBASE + pw*PM_WAVE + 4*k}")
        e("s_waitcnt lgkmcnt(0)")
        for k in range(8):
            b = 64 + 32 * tq
            e(f"v_add_f32 v{b+k}, v{b+k}, v{b+8+k}")
            e(f"v_add_f32 v{b+16+k}, v{b+16+k}, v{b+24+k}")
            e(f"v_add_f32 v{b+k}, v{b+k}, v{b+16+k}")
    e("s_waitcnt vmcnt(0)")
    for wc in range(2):
        e(f"s_cmp_lg_u32 s64, {wc}")
        e(f"s_cbranch_scc1 KB_FIN_{wc}")
        for tq in range(2):
            for half in range(2):
                tl = half + 2 * tq
                for r in range(4):
                    k8 = 4 * half + r
                    yi = 64 + 32 * tq + (7 - k8 if wc else k8)
                    zr = 128 + 4 * tl + r
                    xr = 144 + 4 * tq + (k8 >> 1)
                    e(f"v_add_f32 v{zr}, v{zr}, v{yi}")
                    if k8 & 1:
                        e(f"v_and_b32 v46, 0xffff0000, v{xr}")
                    else:
                        e(f"v_lshlrev_b32 v46, 16, v{xr}")
                    e(f"v_add_f32 v{zr}, v{zr}, v46")
            for d in range(4):
                tl = (d >> 1) + 2 * tq
                z0 = 128 + 4 * tl + 2 * (d & 1)
                e(f"v_cvt_pk_bf16_f32 v{152+4*tq+d}, v{z0}, v{z0+1}")
        e.label(f"KB_FIN_{wc}")
    e("s_nop 1")
    e(f"buffer_store_dwordx4 v[152:155], v42, {sr(SO)}, 0 offen")
    e(f"buffer_store_dwordx4 v[156:159], v43, {sr(SO)}, 0 offen")
    if PROF:
        e("s_waitcnt vmcnt(0)")
    stamp(e, 4)
    stamps_out(e, 1, 5, 16, 17)
    e.label("KB_END")
    e("s_endpgm")
    return e.text(), 256 + NACC

HEADER = open("parallel_sum__spectral_fnet__dense_activation_relu__prompt.s.ref").read().split("; Override launch")[0]

def main(out):
    ka, ka_v = gen_ka()
    kb, kb_v = gen_kb()
    t = HEADER
    t += f"; @launch kernel=fnet_ka_kernel grid=(256,1,1) block=(256,1,1) lds={KA_LDS}\n"
    t += f"; @launch kernel=fnet_kb_kernel grid=(256,1,1) block=(256,1,1) lds={KB_LDS}\n"
    t += '.amdgcn_target "amdgcn-amd-amdhsa--gfx950"\n.text\n'
    for name, body in (("fnet_ka_kernel", ka), ("fnet_kb_kernel", kb)):
        t += f".globl {name}\n.p2align 8\n.type {name},@function\n" + body
    t += '.section .rodata,"a"\n'
    for name, nv in (("fnet_ka_kernel", ka_v), ("fnet_kb_kernel", kb_v)):
        t += f""".p2align 6
.amdhsa_kernel {name}
  .amdhsa_next_free_vgpr {nv}
  .amdhsa_next_free_sgpr 96
  .amdhsa_accum_offset 256
  .amdhsa_group_segment_fixed_size 0
  .amdhsa_kernarg_size 88
  .amdhsa_user_sgpr_count 2
  .amdhsa_user_sgpr_kernarg_segment_ptr 1
  .amdhsa_system_sgpr_workgroup_id_x 1
.end_amdhsa_kernel
"""
    open(out, "w").write(t)

if __name__ == "__main__":
    main(sys.argv[1] if len(sys.argv) > 1 else "parallel_sum__spectral_fnet__dense_activation_relu__prompt.s")
```

```python
import sys, os, re

S, D, F = 2048, 512, 1792
H_OFF, ABT_OFF, W2T_OFF = 0, 0x800000, 0xA00000
H_BYTES = S * F * 2
ABT_PITCH = 2176
ABT_BYTES = 512 * ABT_PITCH
W2T_BYTES = 512 * F * 2
OOB = 0x40000000
PROF = int(os.environ.get("PROF", "0"))
PROF_OFF = 0x4000000

class Emit:
    def __init__(self):
        self.lines = []
        self.nvm = 0
    def __call__(self, s=""):
        m = re.search(r"offset:(-?\d+)", s)
        if m:
            o = int(m.group(1))
            if s.lstrip().startswith("buffer_"): assert 0 <= o <= 4095, s
            if s.lstrip().startswith("ds_"): assert 0 <= o <= 65535, s
        self.lines.append("    " + s if s and not s.endswith(":") else s)
    def vm(self, s):
        if s.endswith(" lds") and self.lines and " m0," in self.lines[-1]:
            self("s_nop 0")
        self(s)
        self.nvm += 1
        return self.nvm - 1
    def wait_vm(self, idx):
        n = self.nvm - idx - 1
        if n <= 62:
            self(f"s_waitcnt vmcnt({n})")
    def label(self, s):
        self.lines.append(s + ":")
    def text(self):
        return "\n".join(self.lines) + "\n"

def stamp(e, k):
    if PROF:
        e(f"s_memtime s[{80+2*k}:{81+2*k}]")
        if k == 0: e("s_memrealtime s[92:93]")
        e("s_waitcnt lgkmcnt(0)")
def stamps_out(e, kidx, nst, wslo, wshi):
    if not PROF: return
    e("s_memrealtime s[94:95]")
    e("s_waitcnt lgkmcnt(0)")
    e(f"s_add_u32 s76, s{wslo}, {PROF_OFF}")
    e(f"s_addc_u32 s77, s{wshi}, 0")
    e("s_and_b32 s77, s77, 0xffff")
    e(f"s_mov_b32 s78, {2*256*4*64}")
    e("s_mov_b32 s79, 0x00020000")
    e(f"s_add_u32 s74, s2, {kidx*256}")
    e("s_lshl_b32 s74, s74, 2")
    e("s_add_u32 s74, s74, s21")
    e("s_lshl_b32 s74, s74, 6")
    e("s_mov_b64 s[70:71], exec")
    e("s_mov_b64 exec, 1")
    e("v_mov_b32 v200, 0")
    for k in range(nst):
        e(f"v_mov_b32 v202, s{80+2*k}")
        e(f"v_mov_b32 v203, s{81+2*k}")
        e(f"buffer_store_dwordx2 v[202:203], v200, s[76:79], s74 offen offset:{8*k}")
    for k in (6, 7):
        e(f"v_mov_b32 v202, s{80+2*k}")
        e(f"v_mov_b32 v203, s{81+2*k}")
        e(f"buffer_store_dwordx2 v[202:203], v200, s[76:79], s74 offen offset:{8*k}")
    e("s_mov_b64 exec, s[70:71]")

def vr(base, n=4): return f"v[{base}:{base+n-1}]"
def ar(base, n=4): return f"a[{base}:{base+n-1}]"
def sr(base, n=4): return f"s[{base}:{base+n-1}]"

def make_srd(e, dst, lo, hi, nbytes, add=0):
    if add:
        e(f"s_add_u32 s{dst}, s{lo}, {add}")
        e(f"s_addc_u32 s{dst+1}, s{hi}, 0")
    else:
        e(f"s_mov_b32 s{dst}, s{lo}")
        e(f"s_mov_b32 s{dst+1}, s{hi}")
    e(f"s_and_b32 s{dst+1}, s{dst+1}, 0xffff")
    e(f"s_mov_b32 s{dst+2}, {nbytes}")
    e(f"s_mov_b32 s{dst+3}, 0x00020000")

WPBASE = 0
WPPITCH = 1056
STG0 = 32 * WPPITCH
STGSZ = 30720
XOFF, W1OFF = 0, 16384
NSTG = 4
TBASE = STG0 + NSTG * STGSZ
KA_LDS = TBASE + 7168

def gen_ka():
    e = Emit()
    e.label("fnet_ka_kernel")
    e("s_cmp_ge_u32 s2, 256")
    e("s_cbranch_scc1 KA_END")
    e("s_load_dwordx2 s[4:5], s[0:1], 0")
    e("s_load_dwordx4 s[12:15], s[0:1], 48")
    e("s_load_dwordx4 s[8:11], s[0:1], 24")
    e("s_load_dwordx2 s[16:17], s[0:1], 80")
    e("s_and_b32 s3, s2, 7")
    e("s_lshr_b32 s18, s2, 3")
    e("s_and_b32 s19, s3, 3")
    e("s_lshl_b32 s19, s19, 2")
    e("s_and_b32 s20, s18, 3")
    e("s_add_u32 s19, s19, s20")
    e("s_lshr_b32 s20, s3, 2")
    e("s_lshl_b32 s20, s20, 3")
    e("s_lshr_b32 s21, s18, 2")
    e("s_add_u32 s20, s20, s21")
    e("v_lshrrev_b32 v1, 6, v0")
    e("v_and_b32 v0, 63, v0")
    e("v_and_b32 v2, 15, v0")
    e("v_readfirstlane_b32 s21, v1")
    e("v_lshrrev_b32 v3, 4, v0")
    SX, SW1, SWPA, SWPB, SW2, SH, SAB, SW2T = 24, 28, 32, 36, 40, 44, 48, 52
    e("s_mov_b32 s61, 3584")
    e("s_lshl_b32 s22, s19, 6")
    e("s_lshl_b32 s23, s21, 4")
    e("s_add_u32 s22, s22, s23")
    XV = 12
    e("v_lshrrev_b32 v20, 3, v0")
    e("v_lshrrev_b32 v21, 4, v0")
    e("v_and_b32 v22, 7, v0")
    e("v_mov_b32 v6, 0x400")
    for h in range(2):
        e(f"v_add_u32 v23, {8*h}, v20")
        e("v_add_u32 v23, s22, v23")
        e(f"v_xor_b32 v24, {4*h}, v21")
        e("v_xor_b32 v24, v22, v24")
        e("v_lshlrev_b32 v24, 4, v24")
        e(f"v_lshl_add_u32 v{XV+h}, v23, 10, v24")
        e("v_sub_u32 v25, 0x800, v23")
        e("v_cmp_eq_u32 vcc, 0, v23")
        e("s_nop 1")
        e("v_cndmask_b32 v25, v25, v6, vcc")
        e(f"v_lshl_add_u32 v{XV+2+h}, v25, 10, v24")
    W1V = 16
    e("s_mul_i32 s59, s20, 224")
    e("s_mov_b32 s60, 4682")
    e("s_and_b32 s62, s21, 1")
    e("s_add_u32 s62, s62, 12")
    for n in range(4):
        z, p, cc, k, t1, t2 = 28, 29, 30, 31, 32, 33
        if n < 3:
            e(f"s_add_u32 s63, s21, {4*n}")
        else:
            e("s_mov_b32 s63, s62")
        e("s_lshl_b32 s63, s63, 6")
        e(f"v_add_u32 v{z}, s63, v0")
        e(f"v_mul_lo_u32 v{p}, v{z}, s60")
        e(f"v_lshrrev_b32 v{p}, 16, v{p}")
        e(f"v_mul_u32_u24 v{cc}, 14, v{p}")
        e(f"v_sub_u32 v{cc}, v{z}, v{cc}")
        e(f"v_and_b32 v{k}, 0x33, v{p}")
        e(f"v_and_b32 v{t1}, 4, v{p}")
        e(f"v_lshlrev_b32 v{t1}, 1, v{t1}")
        e(f"v_and_b32 v{t2}, 8, v{p}")
        e(f"v_lshrrev_b32 v{t2}, 1, v{t2}")
        e(f"v_or3_b32 v{k}, v{k}, v{t1}, v{t2}")
        e(f"v_mul_lo_u32 v{k}, v{k}, s61")
        e(f"v_lshl_add_u32 v{k}, v{cc}, 4, v{k}")
        e(f"v_add_u32 v{W1V+n}, s59, v{k}")
    e("s_cmp_lt_u32 s21, 2")
    e("s_cselect_b64 s[68:69], -1, 1")
    e("s_lshl_b32 s72, s21, 12")
    e("s_lshl_b32 s73, s21, 10")
    e("s_lshl_b32 s67, s62, 10")
    e("s_lshr_b32 s75, s2, 3")
    e("s_waitcnt lgkmcnt(0)")
    stamp(e, 0)
    make_srd(e, SX, 4, 5, S * D * 2)
    make_srd(e, SW1, 12, 13, D * F * 2)
    stage_last = {}
    def stage_ops(st):
        buf = STG0 + (st % NSTG) * STGSZ
        ops = []
        def mk_x(t, h):
            def f():
                e(f"s_mov_b32 s63, {128*st}")
                e(f"s_add_u32 m0, s72, {buf + XOFF + (2*t+h)*1024}")
                e.vm(f"buffer_load_dwordx4 v{XV+2*t+h}, {sr(SX)}, s63 offen lds")
            return f
        def mk_w(n):
            def f():
                e(f"s_mov_b32 s63, {st*64*3584}")
                if n < 3:
                    e(f"s_add_u32 m0, s73, {buf + W1OFF + n*4096}")
                else:
                    e(f"s_add_u32 m0, s67, {buf + W1OFF}")
                    e("s_mov_b64 exec, s[68:69]")
                stage_last[st] = e.vm(f"buffer_load_dwordx4 v{W1V+n}, {sr(SW1)}, s63 offen lds")
                if n == 3:
                    e("s_mov_b64 exec, -1")
            return f
        for t in range(2):
            for h in range(2):
                ops.append(mk_x(t, h))
        for n in range(4):
            ops.append(mk_w(n))
        return ops
    def issue_stage(st):
        for f in stage_ops(st): f()
    pend_dma = []
    issue_stage(0)
    e("s_cmp_lt_u32 s20, 8")
    e(f"s_cselect_b32 s{SWPB}, s8, s10")
    e(f"s_cselect_b32 s{SWPB+1}, s9, s11")
    e(f"s_and_b32 s{SWPB+1}, s{SWPB+1}, 0xffff")
    e(f"s_mov_b32 s{SWPB+2}, {D*D*2}")
    e(f"s_mov_b32 s{SWPB+3}, 0x00020000")
    e("s_cmp_eq_u32 s21, 0")
    e("s_cselect_b32 s58, 9, 8")
    e("s_cmp_lt_u32 s20, s58")
    e(f"s_cselect_b32 s{SWPA}, s8, s10")
    e(f"s_cselect_b32 s{SWPA+1}, s9, s11")
    e(f"s_and_b32 s{SWPA+1}, s{SWPA+1}, 0xffff")
    e(f"s_mov_b32 s{SWPA+2}, {D*D*2}")
    e(f"s_mov_b32 s{SWPA+3}, 0x00020000")
    e("s_lshl_b32 s23, s20, 5")
    e("s_lshl_b32 s56, s21, 3")
    e("s_add_u32 s23, s23, s56")
    e("s_lshl_b32 s23, s23, 10")
    e("v_lshlrev_b32 v10, 4, v0")
    e(f"s_mul_i32 s57, s56, {WPPITCH}")
    e(f"s_add_u32 s57, s57, {WPBASE}")
    for rr in range(8):
        e(f"s_add_u32 m0, s57, {rr*WPPITCH}")
        e(f"s_add_u32 s58, s23, {rr*1024}")
        wp_last = e.vm(f"buffer_load_dwordx4 v10, {sr(SWPA if rr==0 else SWPB)}, s58 offen lds")
    issue_stage(1)
    stage_last[0] = wp_last
    make_srd(e, SW2, 14, 15, F * D * 2)
    e("v_lshrrev_b32 v26, 2, v0")
    e("v_and_b32 v27, 3, v0")
    e("v_lshlrev_b32 v27, 4, v27")
    e("v_lshl_add_u32 v26, v26, 10, v27")
    e("s_mul_i32 s64, s20, 112")
    e("s_lshl_b32 s65, s21, 4")
    e("s_add_u32 s64, s64, s65")
    e("s_lshl_b32 s64, s64, 10")
    e("s_lshl_b32 s65, s19, 6")
    e("s_add_u32 s64, s64, s65")
    w2box = {}
    def w2_issue():
        e(f"s_add_u32 m0, s73, {TBASE}")
        w2box[0] = e.vm(f"buffer_load_dwordx4 v26, {sr(SW2)}, s64 offen lds")
        e("s_cmp_eq_u32 s21, 3")
        e("s_cbranch_scc1 KA_NOW2")
        e(f"s_add_u32 m0, s73, {TBASE + 4096}")
        e(f"s_add_u32 s66, s64, {64*1024}")
        e("s_nop 0")
        e(f"buffer_load_dwordx4 v26, {sr(SW2)}, s66 offen lds")
        e.label("KA_NOW2")
    stamp(e, 1)
    make_srd(e, SH, 16, 17, H_BYTES, H_OFF)
    make_srd(e, SAB, 16, 17, ABT_BYTES, ABT_OFF)
    make_srd(e, SW2T, 16, 17, W2T_BYTES, W2T_OFF)
    ONES = 92
    for r in range(4):
        e(f"v_mov_b32 v{ONES+r}, 0x3f803f80")
    for a in range(52):
        e(f"v_accvgpr_write_b32 a{a}, 0")
    def csa(q): return 4 * q
    def sma(t): return 36 + 4 * t
    def sqa(t): return 44 + 4 * t
    e("v_add_u32 v4, s22, v2")
    e("v_sub_u32 v5, 0x800, v4")
    e("v_cmp_eq_u32 vcc, 0, v4")
    e("s_nop 1")
    e("v_cndmask_b32 v5, v5, v6, vcc")
    e("v_lshrrev_b32 v44, 1, v3")
    e("v_lshlrev_b32 v44, 4, v44")
    e("v_and_b32 v45, 1, v3")
    e("v_lshl_add_u32 v44, v45, 2, v44")
    e("v_lshrrev_b32 v45, 2, v2")
    e("v_add_u32 v44, v44, v45")
    e("v_mul_u32_u24 v44, 224, v44")
    e("v_and_b32 v45, 3, v0")
    e("v_lshl_add_u32 v44, v45, 3, v44")
    e("v_lshrrev_b32 v45, 1, v2")
    e("v_xor_b32 v45, v45, v3")
    e("v_lshlrev_b32 v45, 4, v45")
    e("v_lshl_add_u32 v45, v2, 7, v45")
    e("v_add_u32 v45, s72, v45")
    e("v_xor_b32 v43, 64, v45")
    e(f"v_mul_u32_u24 v46, {WPPITCH}, v2")
    e("v_lshl_add_u32 v46, v3, 4, v46")
    e(f"v_add_u32 v46, {WPBASE}, v46")
    ACC = 176
    for a in range(72):
        e(f"v_mov_b32 v{ACC+a}, 0")
    def acc(q, t): return ACC + (2 * q + t) * 4
    e("v_and_b32 v47, 1, v3")
    e("v_lshlrev_b32 v47, 3, v47")
    e("v_lshrrev_b32 v48, 2, v2")
    e("v_add_u32 v47, v47, v48")
    e("v_lshlrev_b32 v47, 6, v47")
    e("v_lshrrev_b32 v48, 1, v3")
    e("v_lshl_add_u32 v47, v48, 5, v47")
    e("v_and_b32 v48, 3, v0")
    e("v_lshl_add_u32 v47, v48, 3, v47")
    e("v_add_u32 v47, s73, v47")
    e(f"v_add_u32 v47, {TBASE}, v47")
    HA = (61, 64)
    e("s_mul_i32 s65, s20, 224")
    for t in range(2):
        e(f"v_mul_lo_u32 v{HA[t]}, v{4+t}, s61")
        e(f"v_lshl_add_u32 v{HA[t]}, v3, 3, v{HA[t]}")
        e(f"v_add_u32 v{HA[t]}, s65, v{HA[t]}")
    e("v_lshlrev_b32 v80, 4, v3")
    for r in range(4):
        e(f"v_add_u32 v{81+r}, {4*r}, v80")
    e("v_mov_b32 v62, 0")
    e("v_mov_b32 v63, 1.0")
    e("v_mov_b32 v68, -1.0")
    e("s_lshl_b32 s65, s20, 5")
    e("v_add_u32 v65, s65, v2")
    e(f"s_mov_b32 s66, {ABT_PITCH}")
    e("v_mul_lo_u32 v66, v65, s66")
    e("v_add_u32 v67, 0x800, v66")
    e("v_lshl_add_u32 v85, v3, 2, s22")
    e("v_lshl_add_u32 v66, v85, 1, v66")
    e("v_cmp_ne_u32 vcc, 0, v85")
    e("s_nop 1")
    e("v_cndmask_b32 v86, v62, v63, vcc")
    WF = 96; NSL = 10
    XFR = 136
    TRA, XA0, XA1 = 58, 59, 60
    LA = 8
    seq = []
    for st in range(8):
        for k2 in range(2):
            seq.append(("x", st, k2, 0)); seq.append(("x", st, k2, 1))
            for q in range(9):
                seq.append(("w", st, k2, q))
    def xreg(st, k2, t): return XFR + 8 * ((2 * st + k2) % 4) + 4 * t
    wslot = {}
    cnt = [0]
    def pre_stage(st):
        buf = STG0 + (st % NSTG) * STGSZ
        while st not in stage_last:
            pend_dma.pop(0)()
        e.wait_vm(stage_last[st])
        e("s_barrier")
        if st == 0: stamp(e, 2)
        if st == 0:
            pend_dma.extend(stage_ops(2)); pend_dma.extend(stage_ops(3))
        if 2 <= st and st + 2 < 8:
            pend_dma.extend(stage_ops(st + 2))
        if st == 6:
            pend_dma.append(w2_issue)
        e(f"v_add_u32 v{TRA}, {buf + W1OFF}, v44")
        e(f"v_add_u32 v{XA0}, {buf + XOFF}, v45")
        e(f"v_add_u32 v{XA1}, {buf + XOFF}, v43")
    def issue(m):
        kind, st, k2, q = seq[m]
        if kind == "x" and k2 == 0 and q == 0:
            pre_stage(st)
        if kind == "x":
            e(f"ds_read_b128 {vr(xreg(st,k2,q))}, v{XA0 if k2==0 else XA1} offset:{2048*q}")
            return
        sl = WF + 4 * (cnt[0] % NSL); cnt[0] += 1
        wslot[(st, k2, q)] = sl
        if q < 7:
            off = 7168 * k2 + 32 * q
            e(f"ds_read_b64_tr_b16 v[{sl}:{sl+1}], v{TRA} offset:{off}")
            e(f"ds_read_b64_tr_b16 v[{sl+2}:{sl+3}], v{TRA} offset:{off+1792}")
        else:
            e(f"ds_read_b128 {vr(sl)}, v46 offset:{16*WPPITCH*(q-7) + 64*(2*st+k2)}")
    nrd = [1 if (it[0] == "x" or it[3] >= 7) else 2 for it in seq]
    for n in range(LA):
        issue(n)
    for n, it in enumerate(seq):
        if n + LA < len(seq):
            issue(n + LA)
        out = sum(nrd[n + 1: min(len(seq), n + LA + 1)])
        kind, st, k2, q = it
        if kind == "x":
            continue
        e(f"s_waitcnt lgkmcnt({min(out,15)})")
        sl = wslot[(st, k2, q)]
        for t in range(2):
            if q < 7:
                e(f"v_mfma_f32_16x16x32_bf16 {vr(acc(q,t))}, {vr(sl)}, {vr(xreg(st,k2,t))}, {vr(acc(q,t))}")
            else:
                e(f"v_mfma_f32_16x16x32_bf16 {vr(acc(q,t))}, {vr(xreg(st,k2,t))}, {vr(sl)}, {vr(acc(q,t))}")
        if q < 7:
            e(f"v_mfma_f32_16x16x32_bf16 {ar(csa(q))}, {vr(sl)}, {vr(ONES)}, {ar(csa(q))}")
        else:
            e(f"v_mfma_f32_16x16x32_bf16 {ar(csa(q))}, {vr(ONES)}, {vr(sl)}, {ar(csa(q))}")
        if q in (1, 5):
            t_ = q >> 2
            e(f"v_mfma_f32_16x16x32_bf16 {ar(sma(t_))}, {vr(ONES)}, {vr(xreg(st,k2,t_))}, {ar(sma(t_))}")
        if q in (3, 7):
            t_ = q >> 2
            e(f"v_mfma_f32_16x16x32_bf16 {ar(sqa(t_))}, {vr(xreg(st,k2,t_))}, {vr(xreg(st,k2,t_))}, {ar(sqa(t_))}")
        if pend_dma and (q % 2 == 0 or len(pend_dma) > 6):
            pend_dma.pop(0)()
    assert not pend_dma
    stamp(e, 3)
    W2R = 50
    e.wait_vm(w2box[0])
    for n in range(2):
        for h in range(2):
            e(f"ds_read_b64_tr_b16 v[{W2R+4*n+2*h}:{W2R+1+4*n+2*h}], v47 offset:{4096*n + 256*h}")
    SUM, SQ = 42, 44
    e("v_and_b32 v96, 3, v2")
    e("v_lshrrev_b32 v97, 2, v2")
    e("v_lshl_add_u32 v97, v97, 4, v2")
    e("v_lshlrev_b32 v97, 2, v97")
    for t in range(2):
        e(f"v_accvgpr_read_b32 v{SUM+t}, a{sma(t)}")
        for r in range(4):
            e(f"v_accvgpr_read_b32 v{100+4*t+r}, a{sqa(t)+r}")
    for r in range(1, 4):
        e(f"v_cmp_eq_u32 vcc, {r}, v96")
        e("s_nop 1")
        for t in range(2):
            e(f"v_cndmask_b32 v{100+4*t}, v{100+4*t}, v{100+4*t+r}, vcc")
    for t in range(2):
        e(f"ds_bpermute_b32 v{SQ+t}, v97, v{100+4*t}")
    CSV = 116
    for q in range(9):
        for r in range(4):
            e(f"v_accvgpr_read_b32 v{CSV+4*q+r}, a{csa(q)+r}")
    e("s_waitcnt lgkmcnt(0)")
    e("v_lshrrev_b32 v48, 1, v3")
    e("v_lshl_add_u32 v48, v48, 4, v2")
    e("s_lshl_b32 s65, s19, 5")
    e("v_add_u32 v48, s65, v48")
    e("v_mul_lo_u32 v48, v48, s61")
    e("v_and_b32 v49, 1, v3")
    e("v_lshl_add_u32 v48, v49, 4, v48")
    e("s_mul_i32 s65, s20, 224")
    e("s_lshl_b32 s66, s21, 5")
    e("s_add_u32 s65, s65, s66")
    e("v_add_u32 v48, s65, v48")
    e(f"buffer_store_dwordx4 v[{W2R}:{W2R+3}], v48, {sr(SW2T)}, 0 offen")
    e("s_cmp_eq_u32 s21, 3")
    e("s_cbranch_scc1 KA_NOT2")
    e(f"buffer_store_dwordx4 v[{W2R+4}:{W2R+7}], v48, {sr(SW2T)}, 0 offen offset:128")
    e.label("KA_NOT2")
    NM, RP = 104, 108
    MB = 112
    e("s_mov_b32 s67, 0x3b000000")
    e("s_mov_b32 s68, 0x3727c5ac")
    for t in range(2):
        a, b = 96 + t, 98 + t
        e(f"v_mul_f32 v{a}, s67, v{SUM+t}")
        e(f"v_mul_f32 v{b}, s67, v{SQ+t}")
        e(f"v_fma_f32 v{b}, -v{a}, v{a}, v{b}")
        e(f"v_max_f32 v{b}, 0, v{b}")
        e(f"v_cvt_pk_bf16_f32 v{MB+t}, v{a}, v{a}")
        e(f"v_lshlrev_b32 v{MB+t}, 16, v{MB+t}")
        e(f"v_cvt_pk_bf16_f32 v{b}, v{b}, v{b}")
        e(f"v_lshlrev_b32 v{b}, 16, v{b}")
        e(f"v_add_f32 v{b}, s68, v{b}")
        e(f"v_cvt_pk_bf16_f32 v{b}, v{b}, v{b}")
        e(f"v_lshlrev_b32 v{b}, 16, v{b}")
        e(f"v_sqrt_f32 v{b}, v{b}")
        e("s_nop 0")
        e(f"v_cvt_pk_bf16_f32 v{b}, v{b}, v{b}")
        e(f"v_lshlrev_b32 v{b}, 16, v{b}")
        e(f"v_rcp_f32 v{RP+2*t}, v{b}")
        e("s_nop 0")
        e(f"v_mov_b32 v{RP+2*t+1}, v{RP+2*t}")
        e(f"v_sub_f32 v{NM+2*t}, 0, v{MB+t}")
        e(f"v_sub_f32 v{NM+2*t+1}, 0, v{MB+t}")
    MT, RT = 152, 160
    for t in range(2):
        for r in range(4):
            e(f"ds_bpermute_b32 v{MT+4*t+r}, v{81+r}, v{MB+t}")
            e(f"ds_bpermute_b32 v{RT+4*t+r}, v{81+r}, v{RP+2*t}")
    stamp(e, 4)
    for q in range(7):
        for t in range(2):
            A = acc(q, t)
            for h in range(2):
                e(f"v_pk_fma_f32 v[{A+2*h}:{A+2*h+1}], v[{CSV+4*q+2*h}:{CSV+4*q+2*h+1}], v[{NM+2*t}:{NM+2*t+1}], v[{A+2*h}:{A+2*h+1}]")
            for h in range(2):
                e(f"v_pk_mul_f32 v[{A+2*h}:{A+2*h+1}], v[{A+2*h}:{A+2*h+1}], v[{RP+2*t}:{RP+2*t+1}]")
            e(f"v_cvt_pk_bf16_f32 v{A}, v{A}, v{A+1}")
            e(f"v_cvt_pk_bf16_f32 v{A+1}, v{A+2}, v{A+3}")
            e(f"v_pk_max_i16 v{A}, v{A}, 0")
            e(f"v_pk_max_i16 v{A+1}, v{A+1}, 0")
            e(f"buffer_store_dwordx2 v[{A}:{A+1}], v{HA[t]}, {sr(SH)}, 0 offen offset:{32*q}")
    e(f"s_mov_b32 s72, {16*ABT_PITCH}")
    e("s_waitcnt lgkmcnt(0)")
    for q in range(7, 9):
        A0, A1, SG = acc(q, 0), acc(q, 1), 168
        e(f"v_add_u32 v{SG}, {16*(q-7)}, v65")
        e(f"v_cmp_gt_u32 vcc, 0x101, v{SG}")
        e("s_nop 1")
        e(f"v_cndmask_b32 v{SG}, v68, v63, vcc")
        e(f"v_mul_f32 v{SG+1}, v{SG}, v86")
        for r in range(4):
            e(f"v_fma_f32 v{A0+r}, -v{MT+r}, v{CSV+4*q}, v{A0+r}")
            e(f"v_fma_f32 v{A1+r}, -v{MT+4+r}, v{CSV+4*q}, v{A1+r}")
        for r in range(4):
            e(f"v_mul_f32 v{A0+r}, v{RT+r}, v{A0+r}")
            e(f"v_mul_f32 v{A1+r}, v{RT+4+r}, v{A1+r}")
        for r in range(4):
            e(f"v_fma_f32 v{A0+r}, v{SG+(1 if r==0 else 0)}, v{A1+r}, v{A0+r}")
        e(f"v_cvt_pk_bf16_f32 v{SG+2}, v{A0}, v{A0+1}")
        e(f"v_cvt_pk_bf16_f32 v{SG+3}, v{A0+2}, v{A0+3}")
        so = "0" if q == 7 else "s72"
        e(f"buffer_store_dwordx2 v[{SG+2}:{SG+3}], v66, {sr(SAB)}, {so} offen")
        e("s_cmp_lg_u32 s22, 0")
        e(f"s_cbranch_scc1 KA_S0_{q}")
        e(f"v_cvt_pk_bf16_f32 v{SG+4}, v{A1}, v62")
        e("s_mov_b64 s[70:71], exec")
        e("s_mov_b64 exec, 0xffff")
        e(f"buffer_store_dword v{SG+4}, v67, {sr(SAB)}, {so} offen")
        e("s_mov_b64 exec, s[70:71]")
        e.label(f"KA_S0_{q}")
    if PROF:
        e("s_waitcnt vmcnt(0)")
    stamp(e, 5)
    stamps_out(e, 0, 6, 16, 17)
    e("s_cmp_lg_u32 s19, 0")
    e("s_cbranch_scc1 KA_END")
    e("s_cmp_lg_u32 s21, 1")
    e("s_cbranch_scc1 KA_END")
    e("s_lshl_b32 s65, s20, 5")
    e("v_add_u32 v65, s65, v0")
    e(f"s_mov_b32 s66, {ABT_PITCH}")
    e("v_mul_lo_u32 v66, v65, s66")
    e("v_add_u32 v66, 2052, v66")
    e("v_cmp_gt_u32 vcc, 32, v0")
    e("s_and_saveexec_b64 s[70:71], vcc")
    for d in range(15):
        e(f"buffer_store_dword v62, v66, {sr(SAB)}, 0 offen offset:{4*d}")
    e("s_mov_b64 exec, s[70:71]")
    e.label("KA_END")
    e("s_endpgm")
    return e.text(), 256 + 52

PM_PITCH = 52 * 4
PM_MAT = 48 * PM_PITCH
PM_WAVE = 2 * PM_MAT
PMBASE = 0
ZXBASE = 4 * PM_WAVE
RINGW = 32768
KB_LDS = max(ZXBASE + 4 * 3 * 4096, 4 * RINGW)

def gen_kb():
    e = Emit()
    e.label("fnet_kb_kernel")
    e("s_cmp_ge_u32 s2, 256")
    e("s_cbranch_scc1 KB_END")
    e("s_load_dwordx2 s[4:5], s[0:1], 0")
    e("s_load_dwordx4 s[8:11], s[0:1], 8")
    e("s_load_dwordx2 s[12:13], s[0:1], 64")
    e("s_load_dwordx2 s[16:17], s[0:1], 80")
    e("s_and_b32 s3, s2, 7")
    e("s_lshr_b32 s18, s2, 3")
    e("s_and_b32 s19, s3, 3")
    e("s_lshl_b32 s19, s19, 3")
    e("s_and_b32 s20, s18, 7")
    e("s_add_u32 s19, s19, s20")
    e("s_lshr_b32 s20, s3, 2")
    e("s_lshl_b32 s20, s20, 2")
    e("s_lshr_b32 s21, s18, 3")
    e("s_add_u32 s20, s20, s21")
    e("v_lshrrev_b32 v1, 6, v0")
    e("v_and_b32 v0, 63, v0")
    e("v_and_b32 v2, 15, v0")
    e("v_readfirstlane_b32 s21, v1")
    e("v_lshrrev_b32 v3, 4, v0")
    SX, SO, SH, SW2T, SAB, SWR, SWI = 24, 28, 32, 36, 40, 44, 48
    e("s_mov_b32 s61, 3584")
    e(f"s_mov_b32 s62, {ABT_PITCH}")
    e("s_lshl_b32 s52, s19, 5")
    e("s_lshl_b32 s53, s20, 5")
    e("s_sub_u32 s54, 2016, s52")
    e("s_sub_u32 s55, 480, s53")
    e("s_mul_i32 s56, s21, 896")
    e("s_lshl_b32 s57, s21, 9")
    e("v_lshlrev_b32 v4, 4, v3")
    e(f"v_mov_b32 v8, {OOB}")
    e("s_cmp_eq_u32 s21, 3")
    e("s_cselect_b32 s58, 33, 0")
    SETR = [64, 160]
    XR = SETR[1]
    for qa in range(3):
        e(f"v_add_u32 v7, {16*qa}, v2")
        e("v_add_u32 v9, s53, v7")
        e("v_mul_lo_u32 v36, v9, s62")
        e("v_add_u32 v38, 0x800, v36")
        e("v_add_u32 v38, v38, v4")
        e("v_cmp_gt_u32 vcc, s58, v7")
        e("s_nop 1")
        e(f"v_cndmask_b32 v{30+qa}, v8, v38, vcc")
        e("v_add_u32 v9, s52, v7")
        e("v_lshlrev_b32 v36, 12, v9")
        e("v_add_u32 v38, 0x800, v36")
        e("v_add_u32 v38, v38, v4")
        e(f"v_cndmask_b32 v{33+qa}, v8, v38, vcc")
    e("v_lshrrev_b32 v20, 3, v0")
    e("v_lshrrev_b32 v21, 4, v0")
    e("v_and_b32 v22, 7, v0")
    PA, PH, PW, PB, PBR = 10, 14, 16, 18, 36
    for pi in range(4):
        e("v_and_b32 v23, 1, v21")
        e(f"v_or_b32 v23, {pi<<1}, v23")
        e("v_xor_b32 v23, v22, v23")
        e(f"v_add_u32 v24, {8*pi}, v20")
        e("v_mul_lo_u32 v24, v24, s61")
        e(f"v_lshl_add_u32 v{PA+pi}, v23, 4, v24")
    for h in range(2):
        e(f"v_xor_b32 v23, {4*h}, v21")
        e("v_xor_b32 v23, v22, v23")
        e("v_lshlrev_b32 v23, 4, v23")
        e(f"v_add_u32 v24, {8*h}, v20")
        e("v_mul_lo_u32 v25, v24, s61")
        e(f"v_add_u32 v{PH+h}, v25, v23")
        e(f"v_lshl_add_u32 v{PW+h}, v24, 12, v23")
        e("v_mul_lo_u32 v25, v24, s62")
        e(f"v_add_u32 v{PB+h}, v25, v23")
        e("v_sub_u32 v24, 15, v24")
        e("v_mul_lo_u32 v25, v24, s62")
        e(f"v_add_u32 v{PBR+h}, v25, v23")
    e("s_mul_i32 s64, s53, s61"); e("s_add_u32 s64, s64, s56")
    e("s_mul_i32 s65, s55, s61"); e("s_add_u32 s65, s65, s56")
    e("s_mul_i32 s66, s52, s61"); e("s_add_u32 s66, s66, s56")
    e(f"s_add_u32 s67, s66, {16*3584}")
    e("s_mul_i32 s68, s54, s61"); e("s_add_u32 s68, s68, s56")
    e(f"s_add_u32 s69, s68, {16*3584}")
    e("s_lshl_b32 s70, s52, 12"); e("s_add_u32 s70, s70, s57")
    e(f"s_add_u32 s71, s70, {16*4096}")
    e("s_mul_i32 s72, s53, s62"); e("s_add_u32 s72, s72, s57")
    e(f"s_add_u32 s73, s72, {16*ABT_PITCH}")
    e("s_sub_u32 s74, 497, s53"); e("s_mul_i32 s74, s74, s62"); e("s_add_u32 s74, s74, s57")
    e(f"s_sub_u32 s75, s74, {16*ABT_PITCH}")
    e("v_add_u32 v23, s57, v4")
    e("s_add_u32 s59, s53, 32")
    e("s_mul_i32 s60, s59, s62")
    e("v_add_u32 v26, s60, v23")
    e("s_sub_u32 s60, 512, s59")
    e("s_mul_i32 s60, s60, s62")
    e("s_cmp_eq_u32 s59, 256")
    e(f"s_cselect_b32 s60, {OOB}, s60")
    e("v_add_u32 v27, s60, v23")
    e("s_add_u32 s59, s52, 32")
    e("s_lshl_b32 s59, s59, 12")
    e("v_add_u32 v28, s59, v23")
    e("s_lshl_b32 s63, s21, 15")
    RS0, RS1, RA0, RA1 = 40, 41, 42, 43
    e("v_lshrrev_b32 v23, 1, v2")
    e("v_xor_b32 v23, v23, v3")
    e("v_lshlrev_b32 v23, 4, v23")
    e("v_lshl_add_u32 v23, v2, 7, v23")
    e(f"v_add_u32 v{RS0}, s63, v23")
    e(f"v_xor_b32 v{RS1}, 64, v{RS0}")
    e("v_lshrrev_b32 v23, 2, v2")
    e("v_and_b32 v24, 3, v2")
    e("v_lshl_add_u32 v25, v23, 3, v24")
    e("v_lshrrev_b32 v24, 1, v24")
    e("v_lshl_add_u32 v24, v23, 1, v24")
    e("v_xor_b32 v24, v24, v3")
    e("v_lshlrev_b32 v24, 4, v24")
    e("v_lshl_add_u32 v24, v25, 7, v24")
    e(f"v_add_u32 v{RA0}, s63, v24")
    e(f"v_xor_b32 v{RA1}, 64, v{RA0}")
    e("s_waitcnt lgkmcnt(0)")
    stamp(e, 0)
    make_srd(e, SAB, 16, 17, ABT_BYTES, ABT_OFF)
    make_srd(e, SWR, 8, 9, S * S * 2)
    make_srd(e, SWI, 10, 11, S * S * 2)
    make_srd(e, SH, 16, 17, H_BYTES, H_OFF)
    make_srd(e, SW2T, 16, 17, W2T_BYTES, W2T_OFF)
    make_srd(e, SX, 4, 5, S * D * 2)
    make_srd(e, SO, 12, 13, S * D * 2)
    xops = []
    for qa in range(3):
        xops.append(e.vm(f"buffer_load_dwordx4 {vr(XR+4*qa)}, v{30+qa}, {sr(SAB)}, 0 offen"))
    for qa in range(3):
        xops.append(e.vm(f"buffer_load_dwordx4 {vr(XR+12+4*qa)}, v{33+qa}, {sr(SWR)}, 0 offen"))
    NACC = 136
    def zacc(q, tq): return (4 * q + tq) * 4
    def cacc(qa, qb): return 64 + (3 * qa + qb) * 4
    def sacc(qa, qb): return 100 + (3 * qa + qb) * 4
    stages = [("D", k) for k in range(4)] + [("Z", k) for k in range(7)]
    def groups_of(si):
        kind, k = stages[si]
        R = SETR[si % 2]
        gl = []
        if kind == "Z":
            for b in range(2):
                pcs = [(SW2T, PA + pi, 64 + b) for pi in range(4)]
                rds = []
                for half in range(2):
                    for k2 in range(2):
                        rds.append((RA0 if k2 == 0 else RA1, 512 * half, R + 8 * (2 * b + half) + 4 * k2))
                gl.append((pcs, rds))
            for tq in range(4):
                pcs = [(SH, PH + h, 66 + tq) for h in range(2)]
                rds = [(RS0, 0, R + 32 + 8 * tq), (RS1, 0, R + 32 + 8 * tq + 4)]
                gl.append((pcs, rds))
        else:
            specs = [(SAB, PB, 72), (SAB, PB, 73), (SWR, PW, 70), (SWR, PW, 71), (SAB, PBR, 74), (SAB, PBR, 75), (SWI, PW, 70), (SWI, PW, 71)]
            for gi, (srd, pv, sb) in enumerate(specs):
                pcs = [(srd, pv + h, sb) for h in range(2)]
                rds = [(RS0, 0, R + 8 * gi), (RS1, 0, R + 8 * gi + 4)]
                gl.append((pcs, rds))
        return gl
    allg = []
    pend = []
    slot = 0
    for si in range(len(stages)):
        for gi, (pcs, rds) in enumerate(groups_of(si)):
            allg.append((si, gi, pcs, rds, slot % 32)); slot += len(pcs); pend.append(slot)
    dma_last = {}
    def issue_group(gidx):
        si, gi, pcs, rds, s0 = allg[gidx]
        kind, k = stages[si]
        for pn, (srd, pv, sb) in enumerate(pcs):
            e(f"s_add_u32 m0, s63, {(s0+pn)*1024}")
            if pn == 0:
                e(f"s_add_u32 s76, s{sb}, {128*k}")
            dma_last[gidx] = e.vm(f"buffer_load_dwordx4 v{pv}, {sr(srd)}, s76 offen lds")
    direct_last = {}
    def issue_direct(si):
        kind, k = stages[si]
        if kind != "D": return
        R = SETR[si % 2] + 64
        for mi, (srd, vo) in enumerate([(SAB, 26), (SWR, 28), (SAB, 27), (SWI, 28)]):
            for k2 in range(2):
                direct_last[si] = e.vm(f"buffer_load_dwordx4 {vr(R+8*mi+4*k2)}, v{vo}, {sr(srd)}, 0 offen offset:{128*k+64*k2}")
    def mfmas(si):
        if si < 0:
            return [f"v_mfma_f32_16x16x32_bf16 {ar(cacc(qa,qb))}, {vr(XR+4*qa)}, {vr(XR+12+4*qb)}, {ar(cacc(qa,qb))}" for qa in range(3) for qb in range(3)], []
        kind, k = stages[si]
        R = SETR[si % 2]
        early, late = [], []
        if kind == "Z":
            for k2 in range(2):
                for q in range(4):
                    for tq in range(4):
                        early.append(f"v_mfma_f32_16x16x32_bf16 {ar(zacc(q,tq))}, {vr(R+8*q+4*k2)}, {vr(R+32+8*tq+4*k2)}, {ar(zacc(q,tq))}")
        else:
            def areg(mat, q, k2):
                return (R + 32 * mat + 8 * q + 4 * k2) if q < 2 else (R + 64 + 16 * mat + 4 * k2)
            def breg(mat, q, k2):
                return (R + 32 * mat + 16 + 8 * q + 4 * k2) if q < 2 else (R + 64 + 16 * mat + 8 + 4 * k2)
            for k2 in range(2):
                for mat in range(2):
                    fa = cacc if mat == 0 else sacc
                    for qa in range(3):
                        for qb in range(3):
                            s = f"v_mfma_f32_16x16x32_bf16 {ar(fa(qa,qb))}, {vr(areg(mat,qa,k2))}, {vr(breg(mat,qb,k2))}, {ar(fa(qa,qb))}"
                            (late if (qa == 2 or qb == 2) else early).append(s)
        return early, late
    gstart = {}
    for gidx, g in enumerate(allg):
        gstart.setdefault(g[0], gidx)
    nissued = 0
    pieces_issued = 0
    while nissued < len(allg) and pieces_issued + len(allg[nissued][2]) <= 32:
        issue_group(nissued); pieces_issued += len(allg[nissued][2]); nissued += 1
    issue_direct(0)
    for a in range(NACC):
        e(f"v_accvgpr_write_b32 a{a}, 0")
    stamp(e, 1)
    freed_q = []
    for si in range(len(stages) + 1):
        early, late = mfmas(si - 1)
        if si == 0:
            e.wait_vm(xops[-1])
        if si < len(stages):
            gids = [g for g in range(len(allg)) if allg[g][0] == si]
            per = -(-len(early) // len(gids))
            for n, g in enumerate(gids):
                _, _, pcs, rds, s0 = allg[g]
                e.wait_vm(dma_last[g])
                for (areg_, off, dst) in rds:
                    e(f"ds_read_b128 {vr(dst)}, v{areg_} offset:{s0*1024 + off}")
                for m in early[n*per:(n+1)*per]:
                    e(m)
                if n > 0:
                    freed = pend[g - 1]
                    if nissued < len(allg) and pend[nissued] <= freed + 32:
                        e(f"s_waitcnt lgkmcnt({len(rds)})")
                        while nissued < len(allg) and pend[nissued] <= freed + 32:
                            issue_group(nissued); nissued += 1
            e("s_waitcnt lgkmcnt(0)")
            freed = pend[gids[-1]]
            while nissued < len(allg) and pend[nissued] <= freed + 32:
                issue_group(nissued); nissued += 1
            if late:
                e.wait_vm(direct_last[si - 1])
                for m in late: e(m)
            if si + 1 < len(stages):
                issue_direct(si + 1)
        else:
            for m in early: e(m)
            if late:
                e.wait_vm(direct_last[si - 1])
                for m in late: e(m)
        if si == 4: stamp(e, 2)
    stamp(e, 3)
    e("s_barrier")
    e("v_lshlrev_b32 v4, 4, v3")
    e(f"v_mul_u32_u24 v40, {PM_PITCH}, v2")
    e("v_lshl_add_u32 v40, v3, 4, v40")
    e(f"s_mul_i32 s63, s21, {PM_WAVE}")
    e("v_add_u32 v40, s63, v40")
    e("s_and_b32 s59, s20, 7")
    e("s_cmp_eq_u32 s59, 0")
    e("s_cselect_b64 s[58:59], 0xffff, 0")
    e("v_mov_b32 v39, 0")
    e("s_mov_b32 s56, 0x00010001")
    e("s_mov_b32 s57, 0x00010001")
    for qa in range(3):
        for qb in range(3):
            T0 = 64 + 12 * ((3 * qa + qb) % 4)
            for r in range(4):
                e(f"v_accvgpr_read_b32 v{T0+r}, a{cacc(qa,qb)+r}")
                e(f"v_accvgpr_read_b32 v{T0+4+r}, a{sacc(qa,qb)+r}")
            if qa == 0:
                e(f"v_cndmask_b32 v{T0+4}, v{T0+4}, v39, s[58:59]")
            for r in range(4):
                e(f"v_add_f32 v{T0+8+r}, v{T0+r}, v{T0+4+r}")
                e(f"v_sub_f32 v{T0+4+r}, v{T0+r}, v{T0+4+r}")
            off = PMBASE + 16 * qb * PM_PITCH + 64 * qa
            if qa == 2 and qb == 2:
                e("s_mov_b64 exec, 1")
            elif qa == 2:
                e("s_mov_b64 exec, 0xffff")
            elif qb == 2:
                e("s_mov_b64 exec, s[56:57]")
            e(f"ds_write_b128 v40, {vr(T0+8)} offset:{off}")
            e(f"ds_write_b128 v40, {vr(T0+4)} offset:{off+PM_MAT}")
            if qa == 2 or qb == 2:
                e("s_mov_b64 exec, -1")
    e("v_lshlrev_b32 v41, 4, v0")
    e(f"v_add_u32 v41, {ZXBASE}, v41")
    for w in range(4):
        e(f"s_cmp_lg_u32 s21, {w}")
        e(f"s_cbranch_scc1 KB_ZW_{w}")
        for d in range(4):
            if d == w: continue
            si = (w - d - 1) % 4
            for tl in range(4):
                q = 2 * (d & 1) + (tl & 1); tq = 2 * (d >> 1) + (tl >> 1)
                e(f"ds_write_b128 v41, {ar(zacc(q,tq))} offset:{(d*3+si)*4096 + tl*1024}")
        for tl in range(4):
            q = 2 * (w & 1) + (tl & 1); tq = 2 * (w >> 1) + (tl >> 1)
            for r in range(4):
                e(f"v_accvgpr_read_b32 v{128+4*tl+r}, a{zacc(q,tq)+r}")
        e.label(f"KB_ZW_{w}")
    e("s_and_b32 s64, s21, 1")
    e("s_lshr_b32 s65, s21, 1")
    e("s_cmp_eq_u32 s64, 0")
    e("s_cselect_b32 s66, s53, s55")
    e("s_cmp_eq_u32 s65, 0")
    e("s_cselect_b32 s67, s52, s54")
    e("v_add_u32 v42, s67, v2")
    e("v_lshlrev_b32 v42, 10, v42")
    e("v_lshl_add_u32 v42, v3, 4, v42")
    e("s_lshl_b32 s66, s66, 1")
    e("v_add_u32 v42, s66, v42")
    e(f"buffer_load_dwordx4 v[144:147], v42, {sr(SX)}, 0 offen")
    e("v_add_u32 v43, 0x4000, v42")
    e(f"buffer_load_dwordx4 v[148:151], v43, {sr(SX)}, 0 offen")
    e("s_waitcnt lgkmcnt(0)")
    e("s_barrier")
    e("s_mul_i32 s63, s21, 12288")
    e("v_add_u32 v41, s63, v41")
    for si in range(3):
        for tl in range(4):
            e(f"ds_read_b128 {vr(64+16*si+4*tl)}, v41 offset:{si*4096 + tl*1024}")
    e("s_waitcnt lgkmcnt(0)")
    for tl in range(4):
        for r in range(4):
            e(f"v_add_f32 v{128+4*tl+r}, v{128+4*tl+r}, v{64+4*tl+r}")
            e(f"v_add_f32 v{80+4*tl+r}, v{80+4*tl+r}, v{96+4*tl+r}")
            e(f"v_add_f32 v{128+4*tl+r}, v{128+4*tl+r}, v{80+4*tl+r}")
    e("s_xor_b32 s63, s64, s65")
    e(f"s_mul_i32 s63, s63, {PM_MAT}")
    e("v_lshlrev_b32 v44, 3, v3")
    e("v_sub_u32 v45, 25, v44")
    e("s_cmp_eq_u32 s64, 0")
    e("s_cselect_b64 vcc, -1, 0")
    e("v_cndmask_b32 v44, v45, v44, vcc")
    e("v_sub_u32 v45, 32, v2")
    e("s_cmp_eq_u32 s65, 0")
    e("s_cselect_b64 vcc, -1, 0")
    e("v_cndmask_b32 v45, v45, v2, vcc")
    e(f"v_mul_u32_u24 v45, {PM_PITCH}, v45")
    e("v_lshl_add_u32 v44, v44, 2, v45")
    e("v_add_u32 v44, s63, v44")
    e(f"s_cmp_eq_u32 s65, 0")
    e(f"s_mov_b32 s68, {16*PM_PITCH}")
    e(f"s_mov_b32 s69, {-16*PM_PITCH}")
    e("s_cselect_b32 s63, s68, s69")
    e("v_add_u32 v45, s63, v44")
    for tq in range(2):
        for pw in range(4):
            for k in range(2):
                e(f"ds_read_b128 {vr(64 + 32*tq + 8*pw + 4*k)}, v{44+tq} offset:{PMBASE + pw*PM_WAVE + 16*k}")
        e("s_waitcnt lgkmcnt(0)")
        for k in range(8):
            b = 64 + 32 * tq
            e(f"v_add_f32 v{b+k}, v{b+k}, v{b+8+k}")
            e(f"v_add_f32 v{b+16+k}, v{b+16+k}, v{b+24+k}")
            e(f"v_add_f32 v{b+k}, v{b+k}, v{b+16+k}")
    e("s_waitcnt vmcnt(0)")
    for wc in range(2):
        e(f"s_cmp_lg_u32 s64, {wc}")
        e(f"s_cbranch_scc1 KB_FIN_{wc}")
        for tq in range(2):
            for half in range(2):
                tl = half + 2 * tq
                for r in range(4):
                    k8 = 4 * half + r
                    yi = 64 + 32 * tq + (7 - k8 if wc else k8)
                    zr = 128 + 4 * tl + r
                    xr = 144 + 4 * tq + (k8 >> 1)
                    e(f"v_add_f32 v{zr}, v{zr}, v{yi}")
                    if k8 & 1:
                        e(f"v_and_b32 v46, 0xffff0000, v{xr}")
                    else:
                        e(f"v_lshlrev_b32 v46, 16, v{xr}")
                    e(f"v_add_f32 v{zr}, v{zr}, v46")
            for d in range(4):
                tl = (d >> 1) + 2 * tq
                z0 = 128 + 4 * tl + 2 * (d & 1)
                e(f"v_cvt_pk_bf16_f32 v{152+4*tq+d}, v{z0}, v{z0+1}")
        e.label(f"KB_FIN_{wc}")
    e("s_nop 1")
    e(f"buffer_store_dwordx4 v[152:155], v42, {sr(SO)}, 0 offen")
    e(f"buffer_store_dwordx4 v[156:159], v43, {sr(SO)}, 0 offen")
    if PROF:
        e("s_waitcnt vmcnt(0)")
    stamp(e, 4)
    stamps_out(e, 1, 5, 16, 17)
    e.label("KB_END")
    e("s_endpgm")
    return e.text(), 256 + NACC

HEADER = open("parallel_sum__spectral_fnet__dense_activation_relu__prompt.s.ref").read().split("; Override launch")[0]

def main(out):
    ka, ka_v = gen_ka()
    kb, kb_v = gen_kb()
    t = HEADER
    t += f"; @launch kernel=fnet_ka_kernel grid=(256,1,1) block=(256,1,1) lds={KA_LDS}\n"
    t += f"; @launch kernel=fnet_kb_kernel grid=(256,1,1) block=(256,1,1) lds={KB_LDS}\n"
    t += '.amdgcn_target "amdgcn-amd-amdhsa--gfx950"\n.text\n'
    for name, body in (("fnet_ka_kernel", ka), ("fnet_kb_kernel", kb)):
        t += f".globl {name}\n.p2align 8\n.type {name},@function\n" + body
    t += '.section .rodata,"a"\n'
    for name, nv in (("fnet_ka_kernel", ka_v), ("fnet_kb_kernel", kb_v)):
        t += f""".p2align 6
.amdhsa_kernel {name}
  .amdhsa_next_free_vgpr {nv}
  .amdhsa_next_free_sgpr 96
  .amdhsa_accum_offset 256
  .amdhsa_group_segment_fixed_size 0
  .amdhsa_kernarg_size 88
  .amdhsa_user_sgpr_count 2
  .amdhsa_user_sgpr_kernarg_segment_ptr 1
  .amdhsa_system_sgpr_workgroup_id_x 1
.end_amdhsa_kernel
"""
    open(out, "w").write(t)

if __name__ == "__main__":
    main(sys.argv[1] if len(sys.argv) > 1 else "parallel_sum__spectral_fnet__dense_activation_relu__prompt.s")
```

```python
import sys, os, re

S, D, F = 2048, 512, 1792
H_OFF, ABT_OFF, W2T_OFF = 0, 0x800000, 0xA00000
H_BYTES = S * F * 2
ABT_PITCH = 2176
ABT_BYTES = 512 * ABT_PITCH
W2T_BYTES = 512 * F * 2
OOB = 0x40000000
PROF = int(os.environ.get("PROF", "0"))
PROF_OFF = 0x4000000

class Emit:
    def __init__(self):
        self.lines = []
        self.nvm = 0
    def __call__(self, s=""):
        m = re.search(r"offset:(-?\d+)", s)
        if m:
            o = int(m.group(1))
            if s.lstrip().startswith("buffer_"): assert 0 <= o <= 4095, s
            if s.lstrip().startswith("ds_"): assert 0 <= o <= 65535, s
        self.lines.append("    " + s if s and not s.endswith(":") else s)
    def vm(self, s):
        if s.endswith(" lds") and self.lines and " m0," in self.lines[-1]:
            self("s_nop 0")
        self(s)
        self.nvm += 1
        return self.nvm - 1
    def wait_vm(self, idx):
        n = self.nvm - idx - 1
        if n <= 62:
            self(f"s_waitcnt vmcnt({n})")
    def label(self, s):
        self.lines.append(s + ":")
    def text(self):
        return "\n".join(self.lines) + "\n"

def stamp(e, k):
    if PROF:
        e(f"s_memtime s[{80+2*k}:{81+2*k}]")
        if k == 0: e("s_memrealtime s[92:93]")
        e("s_waitcnt lgkmcnt(0)")
def stamps_out(e, kidx, nst, wslo, wshi):
    if not PROF: return
    e("s_memrealtime s[94:95]")
    e("s_waitcnt lgkmcnt(0)")
    e(f"s_add_u32 s76, s{wslo}, {PROF_OFF}")
    e(f"s_addc_u32 s77, s{wshi}, 0")
    e("s_and_b32 s77, s77, 0xffff")
    e(f"s_mov_b32 s78, {2*256*4*64}")
    e("s_mov_b32 s79, 0x00020000")
    e(f"s_add_u32 s74, s2, {kidx*256}")
    e("s_lshl_b32 s74, s74, 2")
    e("s_add_u32 s74, s74, s21")
    e("s_lshl_b32 s74, s74, 6")
    e("s_mov_b64 s[70:71], exec")
    e("s_mov_b64 exec, 1")
    e("v_mov_b32 v200, 0")
    for k in range(nst):
        e(f"v_mov_b32 v202, s{80+2*k}")
        e(f"v_mov_b32 v203, s{81+2*k}")
        e(f"buffer_store_dwordx2 v[202:203], v200, s[76:79], s74 offen offset:{8*k}")
    for k in (6, 7):
        e(f"v_mov_b32 v202, s{80+2*k}")
        e(f"v_mov_b32 v203, s{81+2*k}")
        e(f"buffer_store_dwordx2 v[202:203], v200, s[76:79], s74 offen offset:{8*k}")
    e("s_mov_b64 exec, s[70:71]")

def vr(base, n=4): return f"v[{base}:{base+n-1}]"
def ar(base, n=4): return f"a[{base}:{base+n-1}]"
def sr(base, n=4): return f"s[{base}:{base+n-1}]"

def make_srd(e, dst, lo, hi, nbytes, add=0):
    if add:
        e(f"s_add_u32 s{dst}, s{lo}, {add}")
        e(f"s_addc_u32 s{dst+1}, s{hi}, 0")
    else:
        e(f"s_mov_b32 s{dst}, s{lo}")
        e(f"s_mov_b32 s{dst+1}, s{hi}")
    e(f"s_and_b32 s{dst+1}, s{dst+1}, 0xffff")
    e(f"s_mov_b32 s{dst+2}, {nbytes}")
    e(f"s_mov_b32 s{dst+3}, 0x00020000")

WPBASE = 0
WPPITCH = 1056
STG0 = 32 * WPPITCH
STGSZ = 30720
XOFF, W1OFF = 0, 16384
NSTG = 4
TBASE = STG0 + NSTG * STGSZ
KA_LDS = TBASE + 7168

def gen_ka():
    e = Emit()
    e.label("fnet_ka_kernel")
    e("s_cmp_ge_u32 s2, 256")
    e("s_cbranch_scc1 KA_END")
    e("s_load_dwordx2 s[4:5], s[0:1], 0")
    e("s_load_dwordx4 s[12:15], s[0:1], 48")
    e("s_load_dwordx4 s[8:11], s[0:1], 24")
    e("s_load_dwordx2 s[16:17], s[0:1], 80")
    e("s_load_dwordx4 s[76:79], s[0:1], 8")
    e("s_and_b32 s3, s2, 7")
    e("s_lshr_b32 s18, s2, 3")
    e("s_and_b32 s19, s3, 3")
    e("s_lshl_b32 s19, s19, 2")
    e("s_and_b32 s20, s18, 3")
    e("s_add_u32 s19, s19, s20")
    e("s_lshr_b32 s20, s3, 2")
    e("s_lshl_b32 s20, s20, 3")
    e("s_lshr_b32 s21, s18, 2")
    e("s_add_u32 s20, s20, s21")
    e("v_lshrrev_b32 v1, 6, v0")
    e("v_and_b32 v0, 63, v0")
    e("v_and_b32 v2, 15, v0")
    e("v_readfirstlane_b32 s21, v1")
    e("v_lshrrev_b32 v3, 4, v0")
    SX, SW1, SWPA, SWPB, SW2, SH, SAB, SW2T = 24, 28, 32, 36, 40, 44, 48, 52
    e("s_mov_b32 s61, 3584")
    e("s_lshl_b32 s22, s19, 6")
    e("s_lshl_b32 s23, s21, 4")
    e("s_add_u32 s22, s22, s23")
    XV = 12
    e("v_lshrrev_b32 v20, 3, v0")
    e("v_lshrrev_b32 v21, 4, v0")
    e("v_and_b32 v22, 7, v0")
    e("v_mov_b32 v6, 0x400")
    for h in range(2):
        e(f"v_add_u32 v23, {8*h}, v20")
        e("v_add_u32 v23, s22, v23")
        e(f"v_xor_b32 v24, {4*h}, v21")
        e("v_xor_b32 v24, v22, v24")
        e("v_lshlrev_b32 v24, 4, v24")
        e(f"v_lshl_add_u32 v{XV+h}, v23, 10, v24")
        e("v_sub_u32 v25, 0x800, v23")
        e("v_cmp_eq_u32 vcc, 0, v23")
        e("s_nop 1")
        e("v_cndmask_b32 v25, v25, v6, vcc")
        e(f"v_lshl_add_u32 v{XV+2+h}, v25, 10, v24")
    W1V = 16
    e("s_mul_i32 s59, s20, 224")
    e("s_mov_b32 s60, 4682")
    e("s_and_b32 s62, s21, 1")
    e("s_add_u32 s62, s62, 12")
    for n in range(4):
        z, p, cc, k, t1, t2 = 28, 29, 30, 31, 32, 33
        if n < 3:
            e(f"s_add_u32 s63, s21, {4*n}")
        else:
            e("s_mov_b32 s63, s62")
        e("s_lshl_b32 s63, s63, 6")
        e(f"v_add_u32 v{z}, s63, v0")
        e(f"v_mul_lo_u32 v{p}, v{z}, s60")
        e(f"v_lshrrev_b32 v{p}, 16, v{p}")
        e(f"v_mul_u32_u24 v{cc}, 14, v{p}")
        e(f"v_sub_u32 v{cc}, v{z}, v{cc}")
        e(f"v_and_b32 v{k}, 0x33, v{p}")
        e(f"v_and_b32 v{t1}, 4, v{p}")
        e(f"v_lshlrev_b32 v{t1}, 1, v{t1}")
        e(f"v_and_b32 v{t2}, 8, v{p}")
        e(f"v_lshrrev_b32 v{t2}, 1, v{t2}")
        e(f"v_or3_b32 v{k}, v{k}, v{t1}, v{t2}")
        e(f"v_mul_lo_u32 v{k}, v{k}, s61")
        e(f"v_lshl_add_u32 v{k}, v{cc}, 4, v{k}")
        e(f"v_add_u32 v{W1V+n}, s59, v{k}")
    e("s_cmp_lt_u32 s21, 2")
    e("s_cselect_b64 s[68:69], -1, 1")
    e("s_lshl_b32 s72, s21, 12")
    e("s_lshl_b32 s73, s21, 10")
    e("s_lshl_b32 s67, s62, 10")
    e("s_lshr_b32 s75, s2, 3")
    e("s_waitcnt lgkmcnt(0)")
    stamp(e, 0)
    make_srd(e, SX, 4, 5, S * D * 2)
    make_srd(e, SW1, 12, 13, D * F * 2)
    stage_last = {}
    def stage_ops(st):
        buf = STG0 + (st % NSTG) * STGSZ
        ops = []
        def mk_x(t, h):
            def f():
                e(f"s_mov_b32 s63, {128*st}")
                e(f"s_add_u32 m0, s72, {buf + XOFF + (2*t+h)*1024}")
                e.vm(f"buffer_load_dwordx4 v{XV+2*t+h}, {sr(SX)}, s63 offen lds")
            return f
        def mk_w(n):
            def f():
                e(f"s_mov_b32 s63, {st*64*3584}")
                if n < 3:
                    e(f"s_add_u32 m0, s73, {buf + W1OFF + n*4096}")
                else:
                    e(f"s_add_u32 m0, s67, {buf + W1OFF}")
                    e("s_mov_b64 exec, s[68:69]")
                stage_last[st] = e.vm(f"buffer_load_dwordx4 v{W1V+n}, {sr(SW1)}, s63 offen lds")
                if n == 3:
                    e("s_mov_b64 exec, -1")
            return f
        for t in range(2):
            for h in range(2):
                ops.append(mk_x(t, h))
        for n in range(4):
            ops.append(mk_w(n))
        return ops
    def issue_stage(st):
        for f in stage_ops(st): f()
    pend_dma = []
    issue_stage(0)
    e("s_cmp_lt_u32 s20, 8")
    e(f"s_cselect_b32 s{SWPB}, s8, s10")
    e(f"s_cselect_b32 s{SWPB+1}, s9, s11")
    e(f"s_and_b32 s{SWPB+1}, s{SWPB+1}, 0xffff")
    e(f"s_mov_b32 s{SWPB+2}, {D*D*2}")
    e(f"s_mov_b32 s{SWPB+3}, 0x00020000")
    e("s_cmp_eq_u32 s21, 0")
    e("s_cselect_b32 s58, 9, 8")
    e("s_cmp_lt_u32 s20, s58")
    e(f"s_cselect_b32 s{SWPA}, s8, s10")
    e(f"s_cselect_b32 s{SWPA+1}, s9, s11")
    e(f"s_and_b32 s{SWPA+1}, s{SWPA+1}, 0xffff")
    e(f"s_mov_b32 s{SWPA+2}, {D*D*2}")
    e(f"s_mov_b32 s{SWPA+3}, 0x00020000")
    e("s_lshl_b32 s23, s20, 5")
    e("s_lshl_b32 s56, s21, 3")
    e("s_add_u32 s23, s23, s56")
    e("s_lshl_b32 s23, s23, 10")
    e("v_lshlrev_b32 v10, 4, v0")
    e(f"s_mul_i32 s57, s56, {WPPITCH}")
    e(f"s_add_u32 s57, s57, {WPBASE}")
    for rr in range(8):
        e(f"s_add_u32 m0, s57, {rr*WPPITCH}")
        e(f"s_add_u32 s58, s23, {rr*1024}")
        wp_last = e.vm(f"buffer_load_dwordx4 v10, {sr(SWPA if rr==0 else SWPB)}, s58 offen lds")
    issue_stage(1)
    stage_last[0] = wp_last
    make_srd(e, SW2, 14, 15, F * D * 2)
    e("v_lshrrev_b32 v26, 2, v0")
    e("v_and_b32 v27, 3, v0")
    e("v_lshlrev_b32 v27, 4, v27")
    e("v_lshl_add_u32 v26, v26, 10, v27")
    e("s_mul_i32 s64, s20, 112")
    e("s_lshl_b32 s65, s21, 4")
    e("s_add_u32 s64, s64, s65")
    e("s_lshl_b32 s64, s64, 10")
    e("s_lshl_b32 s65, s19, 6")
    e("s_add_u32 s64, s64, s65")
    w2box = {}
    def w2_issue():
        e(f"s_add_u32 m0, s73, {TBASE}")
        w2box[0] = e.vm(f"buffer_load_dwordx4 v26, {sr(SW2)}, s64 offen lds")
        e("s_cmp_eq_u32 s21, 3")
        e("s_cbranch_scc1 KA_NOW2")
        e(f"s_add_u32 m0, s73, {TBASE + 4096}")
        e(f"s_add_u32 s66, s64, {64*1024}")
        e("s_nop 0")
        e(f"buffer_load_dwordx4 v26, {sr(SW2)}, s66 offen lds")
        e.label("KA_NOW2")
    stamp(e, 1)
    make_srd(e, SH, 16, 17, H_BYTES, H_OFF)
    make_srd(e, SAB, 16, 17, ABT_BYTES, ABT_OFF)
    make_srd(e, SW2T, 16, 17, W2T_BYTES, W2T_OFF)
    ONES = 92
    for r in range(4):
        e(f"v_mov_b32 v{ONES+r}, 0x3f803f80")
    for a in range(52):
        e(f"v_accvgpr_write_b32 a{a}, 0")
    def csa(q): return 4 * q
    def sma(t): return 36 + 4 * t
    def sqa(t): return 44 + 4 * t
    e("v_add_u32 v4, s22, v2")
    e("v_sub_u32 v5, 0x800, v4")
    e("v_cmp_eq_u32 vcc, 0, v4")
    e("s_nop 1")
    e("v_cndmask_b32 v5, v5, v6, vcc")
    e("v_lshrrev_b32 v44, 1, v3")
    e("v_lshlrev_b32 v44, 4, v44")
    e("v_and_b32 v45, 1, v3")
    e("v_lshl_add_u32 v44, v45, 2, v44")
    e("v_lshrrev_b32 v45, 2, v2")
    e("v_add_u32 v44, v44, v45")
    e("v_mul_u32_u24 v44, 224, v44")
    e("v_and_b32 v45, 3, v0")
    e("v_lshl_add_u32 v44, v45, 3, v44")
    e("v_lshrrev_b32 v45, 1, v2")
    e("v_xor_b32 v45, v45, v3")
    e("v_lshlrev_b32 v45, 4, v45")
    e("v_lshl_add_u32 v45, v2, 7, v45")
    e("v_add_u32 v45, s72, v45")
    e("v_xor_b32 v43, 64, v45")
    e(f"v_mul_u32_u24 v46, {WPPITCH}, v2")
    e("v_lshl_add_u32 v46, v3, 4, v46")
    e(f"v_add_u32 v46, {WPBASE}, v46")
    ACC = 176
    for a in range(72):
        e(f"v_mov_b32 v{ACC+a}, 0")
    def acc(q, t): return ACC + (2 * q + t) * 4
    e("v_and_b32 v47, 1, v3")
    e("v_lshlrev_b32 v47, 3, v47")
    e("v_lshrrev_b32 v48, 2, v2")
    e("v_add_u32 v47, v47, v48")
    e("v_lshlrev_b32 v47, 6, v47")
    e("v_lshrrev_b32 v48, 1, v3")
    e("v_lshl_add_u32 v47, v48, 5, v47")
    e("v_and_b32 v48, 3, v0")
    e("v_lshl_add_u32 v47, v48, 3, v47")
    e("v_add_u32 v47, s73, v47")
    e(f"v_add_u32 v47, {TBASE}, v47")
    HA = (61, 64)
    e("s_mul_i32 s65, s20, 224")
    for t in range(2):
        e(f"v_mul_lo_u32 v{HA[t]}, v{4+t}, s61")
        e(f"v_lshl_add_u32 v{HA[t]}, v3, 3, v{HA[t]}")
        e(f"v_add_u32 v{HA[t]}, s65, v{HA[t]}")
    e("v_lshlrev_b32 v80, 4, v3")
    for r in range(4):
        e(f"v_add_u32 v{81+r}, {4*r}, v80")
    e("v_mov_b32 v62, 0")
    e("v_mov_b32 v63, 1.0")
    e("v_mov_b32 v68, -1.0")
    e("s_lshl_b32 s65, s20, 5")
    e("v_add_u32 v65, s65, v2")
    e(f"s_mov_b32 s66, {ABT_PITCH}")
    e("v_mul_lo_u32 v66, v65, s66")
    e("v_add_u32 v67, 0x800, v66")
    e("v_lshl_add_u32 v85, v3, 2, s22")
    e("v_lshl_add_u32 v66, v85, 1, v66")
    e("v_cmp_ne_u32 vcc, 0, v85")
    e("s_nop 1")
    e("v_cndmask_b32 v86, v62, v63, vcc")
    PFA, PFB = 4, 8
    e("s_lshl_b32 s23, s2, 2")
    e("s_add_u32 s23, s23, s21")
    e("s_lshl_b32 s23, s23, 12")
    def pf_issue():
        make_srd(e, PFA, 76, 77, S * S * 2)
        make_srd(e, PFB, 78, 79, S * S * 2)
        for srd in (PFA, PFB):
            for hh in range(2):
                e.vm(f"buffer_load_dwordx4 v[72:75], v10, {sr(srd)}, s23 offen offset:{1024*hh}")
    WF = 96; NSL = 10
    XFR = 136
    TRA, XA0, XA1 = 58, 59, 60
    LA = 8
    seq = []
    for st in range(8):
        for k2 in range(2):
            seq.append(("x", st, k2, 0)); seq.append(("x", st, k2, 1))
            for q in range(9):
                seq.append(("w", st, k2, q))
    def xreg(st, k2, t): return XFR + 8 * ((2 * st + k2) % 4) + 4 * t
    wslot = {}
    cnt = [0]
    def pre_stage(st):
        buf = STG0 + (st % NSTG) * STGSZ
        while st not in stage_last:
            pend_dma.pop(0)()
        e.wait_vm(stage_last[st])
        e("s_barrier")
        if st == 0: stamp(e, 2)
        if st == 0:
            pend_dma.extend(stage_ops(2)); pend_dma.extend(stage_ops(3))
        if 2 <= st and st + 2 < 8:
            pend_dma.extend(stage_ops(st + 2))
        if st == 6:
            pend_dma.append(w2_issue)
        if st == 7 and not os.environ.get("NOPF"):
            pend_dma.append(pf_issue)
        e(f"v_add_u32 v{TRA}, {buf + W1OFF}, v44")
        e(f"v_add_u32 v{XA0}, {buf + XOFF}, v45")
        e(f"v_add_u32 v{XA1}, {buf + XOFF}, v43")
    def issue(m):
        kind, st, k2, q = seq[m]
        if kind == "x" and k2 == 0 and q == 0:
            pre_stage(st)
        if kind == "x":
            e(f"ds_read_b128 {vr(xreg(st,k2,q))}, v{XA0 if k2==0 else XA1} offset:{2048*q}")
            return
        sl = WF + 4 * (cnt[0] % NSL); cnt[0] += 1
        wslot[(st, k2, q)] = sl
        if q < 7:
            off = 7168 * k2 + 32 * q
            e(f"ds_read_b64_tr_b16 v[{sl}:{sl+1}], v{TRA} offset:{off}")
            e(f"ds_read_b64_tr_b16 v[{sl+2}:{sl+3}], v{TRA} offset:{off+1792}")
        else:
            e(f"ds_read_b128 {vr(sl)}, v46 offset:{16*WPPITCH*(q-7) + 64*(2*st+k2)}")
    nrd = [1 if (it[0] == "x" or it[3] >= 7) else 2 for it in seq]
    for n in range(LA):
        issue(n)
    for n, it in enumerate(seq):
        if n + LA < len(seq):
            issue(n + LA)
        out = sum(nrd[n + 1: min(len(seq), n + LA + 1)])
        kind, st, k2, q = it
        if kind == "x":
            continue
        e(f"s_waitcnt lgkmcnt({min(out,15)})")
        sl = wslot[(st, k2, q)]
        for t in range(2):
            if q < 7:
                e(f"v_mfma_f32_16x16x32_bf16 {vr(acc(q,t))}, {vr(sl)}, {vr(xreg(st,k2,t))}, {vr(acc(q,t))}")
            else:
                e(f"v_mfma_f32_16x16x32_bf16 {vr(acc(q,t))}, {vr(xreg(st,k2,t))}, {vr(sl)}, {vr(acc(q,t))}")
        if q < 7:
            e(f"v_mfma_f32_16x16x32_bf16 {ar(csa(q))}, {vr(sl)}, {vr(ONES)}, {ar(csa(q))}")
        else:
            e(f"v_mfma_f32_16x16x32_bf16 {ar(csa(q))}, {vr(ONES)}, {vr(sl)}, {ar(csa(q))}")
        if q in (1, 5):
            t_ = q >> 2
            e(f"v_mfma_f32_16x16x32_bf16 {ar(sma(t_))}, {vr(ONES)}, {vr(xreg(st,k2,t_))}, {ar(sma(t_))}")
        if q in (3, 7):
            t_ = q >> 2
            e(f"v_mfma_f32_16x16x32_bf16 {ar(sqa(t_))}, {vr(xreg(st,k2,t_))}, {vr(xreg(st,k2,t_))}, {ar(sqa(t_))}")
        if pend_dma and (q % 2 == 0 or len(pend_dma) > 6):
            pend_dma.pop(0)()
    assert not pend_dma
    stamp(e, 3)
    W2R = 50
    e.wait_vm(w2box[0])
    for n in range(2):
        for h in range(2):
            e(f"ds_read_b64_tr_b16 v[{W2R+4*n+2*h}:{W2R+1+4*n+2*h}], v47 offset:{4096*n + 256*h}")
    SUM, SQ = 42, 44
    e("v_and_b32 v96, 3, v2")
    e("v_lshrrev_b32 v97, 2, v2")
    e("v_lshl_add_u32 v97, v97, 4, v2")
    e("v_lshlrev_b32 v97, 2, v97")
    for t in range(2):
        e(f"v_accvgpr_read_b32 v{SUM+t}, a{sma(t)}")
        for r in range(4):
            e(f"v_accvgpr_read_b32 v{100+4*t+r}, a{sqa(t)+r}")
    for r in range(1, 4):
        e(f"v_cmp_eq_u32 vcc, {r}, v96")
        e("s_nop 1")
        for t in range(2):
            e(f"v_cndmask_b32 v{100+4*t}, v{100+4*t}, v{100+4*t+r}, vcc")
    for t in range(2):
        e(f"ds_bpermute_b32 v{SQ+t}, v97, v{100+4*t}")
    CSV = 116
    for q in range(9):
        for r in range(4):
            e(f"v_accvgpr_read_b32 v{CSV+4*q+r}, a{csa(q)+r}")
    e("s_waitcnt lgkmcnt(0)")
    e("v_lshrrev_b32 v48, 1, v3")
    e("v_lshl_add_u32 v48, v48, 4, v2")
    e("s_lshl_b32 s65, s19, 5")
    e("v_add_u32 v48, s65, v48")
    e("v_mul_lo_u32 v48, v48, s61")
    e("v_and_b32 v49, 1, v3")
    e("v_lshl_add_u32 v48, v49, 4, v48")
    e("s_mul_i32 s65, s20, 224")
    e("s_lshl_b32 s66, s21, 5")
    e("s_add_u32 s65, s65, s66")
    e("v_add_u32 v48, s65, v48")
    e(f"buffer_store_dwordx4 v[{W2R}:{W2R+3}], v48, {sr(SW2T)}, 0 offen")
    e("s_cmp_eq_u32 s21, 3")
    e("s_cbranch_scc1 KA_NOT2")
    e(f"buffer_store_dwordx4 v[{W2R+4}:{W2R+7}], v48, {sr(SW2T)}, 0 offen offset:128")
    e.label("KA_NOT2")
    NM, RP = 104, 108
    MB = 112
    e("s_mov_b32 s67, 0x3b000000")
    e("s_mov_b32 s68, 0x3727c5ac")
    for t in range(2):
        a, b = 96 + t, 98 + t
        e(f"v_mul_f32 v{a}, s67, v{SUM+t}")
        e(f"v_mul_f32 v{b}, s67, v{SQ+t}")
        e(f"v_fma_f32 v{b}, -v{a}, v{a}, v{b}")
        e(f"v_max_f32 v{b}, 0, v{b}")
        e(f"v_cvt_pk_bf16_f32 v{MB+t}, v{a}, v{a}")
        e(f"v_lshlrev_b32 v{MB+t}, 16, v{MB+t}")
        e(f"v_cvt_pk_bf16_f32 v{b}, v{b}, v{b}")
        e(f"v_lshlrev_b32 v{b}, 16, v{b}")
        e(f"v_add_f32 v{b}, s68, v{b}")
        e(f"v_cvt_pk_bf16_f32 v{b}, v{b}, v{b}")
        e(f"v_lshlrev_b32 v{b}, 16, v{b}")
        e(f"v_sqrt_f32 v{b}, v{b}")
        e("s_nop 0")
        e(f"v_cvt_pk_bf16_f32 v{b}, v{b}, v{b}")
        e(f"v_lshlrev_b32 v{b}, 16, v{b}")
        e(f"v_rcp_f32 v{RP+2*t}, v{b}")
        e("s_nop 0")
        e(f"v_mov_b32 v{RP+2*t+1}, v{RP+2*t}")
        e(f"v_sub_f32 v{NM+2*t}, 0, v{MB+t}")
        e(f"v_sub_f32 v{NM+2*t+1}, 0, v{MB+t}")
    MT, RT = 152, 160
    for t in range(2):
        for r in range(4):
            e(f"ds_bpermute_b32 v{MT+4*t+r}, v{81+r}, v{MB+t}")
            e(f"ds_bpermute_b32 v{RT+4*t+r}, v{81+r}, v{RP+2*t}")
    stamp(e, 4)
    for q in range(7):
        for t in range(2):
            A = acc(q, t)
            for h in range(2):
                e(f"v_pk_fma_f32 v[{A+2*h}:{A+2*h+1}], v[{CSV+4*q+2*h}:{CSV+4*q+2*h+1}], v[{NM+2*t}:{NM+2*t+1}], v[{A+2*h}:{A+2*h+1}]")
            for h in range(2):
                e(f"v_pk_mul_f32 v[{A+2*h}:{A+2*h+1}], v[{A+2*h}:{A+2*h+1}], v[{RP+2*t}:{RP+2*t+1}]")
            e(f"v_cvt_pk_bf16_f32 v{A}, v{A}, v{A+1}")
            e(f"v_cvt_pk_bf16_f32 v{A+1}, v{A+2}, v{A+3}")
            e(f"v_pk_max_i16 v{A}, v{A}, 0")
            e(f"v_pk_max_i16 v{A+1}, v{A+1}, 0")
            e(f"buffer_store_dwordx2 v[{A}:{A+1}], v{HA[t]}, {sr(SH)}, 0 offen offset:{32*q}")
    e(f"s_mov_b32 s72, {16*ABT_PITCH}")
    e("s_waitcnt lgkmcnt(0)")
    for q in range(7, 9):
        A0, A1, SG = acc(q, 0), acc(q, 1), 168
        e(f"v_add_u32 v{SG}, {16*(q-7)}, v65")
        e(f"v_cmp_gt_u32 vcc, 0x101, v{SG}")
        e("s_nop 1")
        e(f"v_cndmask_b32 v{SG}, v68, v63, vcc")
        e(f"v_mul_f32 v{SG+1}, v{SG}, v86")
        for r in range(4):
            e(f"v_fma_f32 v{A0+r}, -v{MT+r}, v{CSV+4*q}, v{A0+r}")
            e(f"v_fma_f32 v{A1+r}, -v{MT+4+r}, v{CSV+4*q}, v{A1+r}")
        for r in range(4):
            e(f"v_mul_f32 v{A0+r}, v{RT+r}, v{A0+r}")
            e(f"v_mul_f32 v{A1+r}, v{RT+4+r}, v{A1+r}")
        for r in range(4):
            e(f"v_fma_f32 v{A0+r}, v{SG+(1 if r==0 else 0)}, v{A1+r}, v{A0+r}")
        e(f"v_cvt_pk_bf16_f32 v{SG+2}, v{A0}, v{A0+1}")
        e(f"v_cvt_pk_bf16_f32 v{SG+3}, v{A0+2}, v{A0+3}")
        so = "0" if q == 7 else "s72"
        e(f"buffer_store_dwordx2 v[{SG+2}:{SG+3}], v66, {sr(SAB)}, {so} offen")
        e("s_cmp_lg_u32 s22, 0")
        e(f"s_cbranch_scc1 KA_S0_{q}")
        e(f"v_cvt_pk_bf16_f32 v{SG+4}, v{A1}, v62")
        e("s_mov_b64 s[70:71], exec")
        e("s_mov_b64 exec, 0xffff")
        e(f"buffer_store_dword v{SG+4}, v67, {sr(SAB)}, {so} offen")
        e("s_mov_b64 exec, s[70:71]")
        e.label(f"KA_S0_{q}")
    if PROF:
        e("s_waitcnt vmcnt(0)")
    stamp(e, 5)
    stamps_out(e, 0, 6, 16, 17)
    e("s_cmp_lg_u32 s19, 0")
    e("s_cbranch_scc1 KA_END")
    e("s_cmp_lg_u32 s21, 1")
    e("s_cbranch_scc1 KA_END")
    e("s_lshl_b32 s65, s20, 5")
    e("v_add_u32 v65, s65, v0")
    e(f"s_mov_b32 s66, {ABT_PITCH}")
    e("v_mul_lo_u32 v66, v65, s66")
    e("v_add_u32 v66, 2052, v66")
    e("v_cmp_gt_u32 vcc, 32, v0")
    e("s_and_saveexec_b64 s[70:71], vcc")
    for d in range(15):
        e(f"buffer_store_dword v62, v66, {sr(SAB)}, 0 offen offset:{4*d}")
    e("s_mov_b64 exec, s[70:71]")
    e.label("KA_END")
    e("s_endpgm")
    return e.text(), 256 + 52

PM_PITCH = 52 * 4
PM_MAT = 48 * PM_PITCH
PM_WAVE = 2 * PM_MAT
PMBASE = 0
ZXBASE = 4 * PM_WAVE
RINGW = 32768
KB_LDS = max(ZXBASE + 4 * 3 * 4096, 4 * RINGW)

def gen_kb():
    e = Emit()
    e.label("fnet_kb_kernel")
    e("s_cmp_ge_u32 s2, 256")
    e("s_cbranch_scc1 KB_END")
    e("s_load_dwordx2 s[4:5], s[0:1], 0")
    e("s_load_dwordx4 s[8:11], s[0:1], 8")
    e("s_load_dwordx2 s[12:13], s[0:1], 64")
    e("s_load_dwordx2 s[16:17], s[0:1], 80")
    e("s_and_b32 s3, s2, 7")
    e("s_lshr_b32 s18, s2, 3")
    e("s_and_b32 s19, s3, 3")
    e("s_lshl_b32 s19, s19, 3")
    e("s_and_b32 s20, s18, 7")
    e("s_add_u32 s19, s19, s20")
    e("s_lshr_b32 s20, s3, 2")
    e("s_lshl_b32 s20, s20, 2")
    e("s_lshr_b32 s21, s18, 3")
    e("s_add_u32 s20, s20, s21")
    e("v_lshrrev_b32 v1, 6, v0")
    e("v_and_b32 v0, 63, v0")
    e("v_and_b32 v2, 15, v0")
    e("v_readfirstlane_b32 s21, v1")
    e("v_lshrrev_b32 v3, 4, v0")
    SX, SO, SH, SW2T, SAB, SWR, SWI = 24, 28, 32, 36, 40, 44, 48
    e("s_mov_b32 s61, 3584")
    e(f"s_mov_b32 s62, {ABT_PITCH}")
    e("s_lshl_b32 s52, s19, 5")
    e("s_lshl_b32 s53, s20, 5")
    e("s_sub_u32 s54, 2016, s52")
    e("s_sub_u32 s55, 480, s53")
    e("s_mul_i32 s56, s21, 896")
    e("s_lshl_b32 s57, s21, 9")
    e("v_lshlrev_b32 v4, 4, v3")
    e(f"v_mov_b32 v8, {OOB}")
    e("s_cmp_eq_u32 s21, 3")
    e("s_cselect_b32 s58, 33, 0")
    SETR = [64, 160]
    XR = SETR[1]
    for qa in range(3):
        e(f"v_add_u32 v7, {16*qa}, v2")
        e("v_add_u32 v9, s53, v7")
        e("v_mul_lo_u32 v36, v9, s62")
        e("v_add_u32 v38, 0x800, v36")
        e("v_add_u32 v38, v38, v4")
        e("v_cmp_gt_u32 vcc, s58, v7")
        e("s_nop 1")
        e(f"v_cndmask_b32 v{30+qa}, v8, v38, vcc")
        e("v_add_u32 v9, s52, v7")
        e("v_lshlrev_b32 v36, 12, v9")
        e("v_add_u32 v38, 0x800, v36")
        e("v_add_u32 v38, v38, v4")
        e(f"v_cndmask_b32 v{33+qa}, v8, v38, vcc")
    e("v_lshrrev_b32 v20, 3, v0")
    e("v_lshrrev_b32 v21, 4, v0")
    e("v_and_b32 v22, 7, v0")
    PA, PH, PW, PB, PBR = 10, 14, 16, 18, 36
    for pi in range(4):
        e("v_and_b32 v23, 1, v21")
        e(f"v_or_b32 v23, {pi<<1}, v23")
        e("v_xor_b32 v23, v22, v23")
        e(f"v_add_u32 v24, {8*pi}, v20")
        e("v_mul_lo_u32 v24, v24, s61")
        e(f"v_lshl_add_u32 v{PA+pi}, v23, 4, v24")
    for h in range(2):
        e(f"v_xor_b32 v23, {4*h}, v21")
        e("v_xor_b32 v23, v22, v23")
        e("v_lshlrev_b32 v23, 4, v23")
        e(f"v_add_u32 v24, {8*h}, v20")
        e("v_mul_lo_u32 v25, v24, s61")
        e(f"v_add_u32 v{PH+h}, v25, v23")
        e(f"v_lshl_add_u32 v{PW+h}, v24, 12, v23")
        e("v_mul_lo_u32 v25, v24, s62")
        e(f"v_add_u32 v{PB+h}, v25, v23")
        e("v_sub_u32 v24, 15, v24")
        e("v_mul_lo_u32 v25, v24, s62")
        e(f"v_add_u32 v{PBR+h}, v25, v23")
    e("s_mul_i32 s64, s53, s61"); e("s_add_u32 s64, s64, s56")
    e("s_mul_i32 s65, s55, s61"); e("s_add_u32 s65, s65, s56")
    e("s_mul_i32 s66, s52, s61"); e("s_add_u32 s66, s66, s56")
    e(f"s_add_u32 s67, s66, {16*3584}")
    e("s_mul_i32 s68, s54, s61"); e("s_add_u32 s68, s68, s56")
    e(f"s_add_u32 s69, s68, {16*3584}")
    e("s_lshl_b32 s70, s52, 12"); e("s_add_u32 s70, s70, s57")
    e(f"s_add_u32 s71, s70, {16*4096}")
    e("s_mul_i32 s72, s53, s62"); e("s_add_u32 s72, s72, s57")
    e(f"s_add_u32 s73, s72, {16*ABT_PITCH}")
    e("s_sub_u32 s74, 497, s53"); e("s_mul_i32 s74, s74, s62"); e("s_add_u32 s74, s74, s57")
    e(f"s_sub_u32 s75, s74, {16*ABT_PITCH}")
    e("v_add_u32 v23, s57, v4")
    e("s_add_u32 s59, s53, 32")
    e("s_mul_i32 s60, s59, s62")
    e("v_add_u32 v26, s60, v23")
    e("s_sub_u32 s60, 512, s59")
    e("s_mul_i32 s60, s60, s62")
    e("s_cmp_eq_u32 s59, 256")
    e(f"s_cselect_b32 s60, {OOB}, s60")
    e("v_add_u32 v27, s60, v23")
    e("s_add_u32 s59, s52, 32")
    e("s_lshl_b32 s59, s59, 12")
    e("v_add_u32 v28, s59, v23")
    e("s_lshl_b32 s63, s21, 15")
    RS0, RS1, RA0, RA1 = 40, 41, 42, 43
    e("v_lshrrev_b32 v23, 1, v2")
    e("v_xor_b32 v23, v23, v3")
    e("v_lshlrev_b32 v23, 4, v23")
    e("v_lshl_add_u32 v23, v2, 7, v23")
    e(f"v_add_u32 v{RS0}, s63, v23")
    e(f"v_xor_b32 v{RS1}, 64, v{RS0}")
    e("v_lshrrev_b32 v23, 2, v2")
    e("v_and_b32 v24, 3, v2")
    e("v_lshl_add_u32 v25, v23, 3, v24")
    e("v_lshrrev_b32 v24, 1, v24")
    e("v_lshl_add_u32 v24, v23, 1, v24")
    e("v_xor_b32 v24, v24, v3")
    e("v_lshlrev_b32 v24, 4, v24")
    e("v_lshl_add_u32 v24, v25, 7, v24")
    e(f"v_add_u32 v{RA0}, s63, v24")
    e(f"v_xor_b32 v{RA1}, 64, v{RA0}")
    e("s_waitcnt lgkmcnt(0)")
    stamp(e, 0)
    make_srd(e, SAB, 16, 17, ABT_BYTES, ABT_OFF)
    make_srd(e, SWR, 8, 9, S * S * 2)
    make_srd(e, SWI, 10, 11, S * S * 2)
    make_srd(e, SH, 16, 17, H_BYTES, H_OFF)
    make_srd(e, SW2T, 16, 17, W2T_BYTES, W2T_OFF)
    make_srd(e, SX, 4, 5, S * D * 2)
    make_srd(e, SO, 12, 13, S * D * 2)
    xops = []
    for qa in range(3):
        xops.append(e.vm(f"buffer_load_dwordx4 {vr(XR+4*qa)}, v{30+qa}, {sr(SAB)}, 0 offen"))
    for qa in range(3):
        xops.append(e.vm(f"buffer_load_dwordx4 {vr(XR+12+4*qa)}, v{33+qa}, {sr(SWR)}, 0 offen"))
    NACC = 136
    def zacc(q, tq): return (4 * q + tq) * 4
    def cacc(qa, qb): return 64 + (3 * qa + qb) * 4
    def sacc(qa, qb): return 100 + (3 * qa + qb) * 4
    stages = [("D", k) for k in range(4)] + [("Z", k) for k in range(7)]
    def groups_of(si):
        kind, k = stages[si]
        R = SETR[si % 2]
        gl = []
        if kind == "Z":
            for b in range(2):
                pcs = [(SW2T, PA + pi, 64 + b) for pi in range(4)]
                rds = []
                for half in range(2):
                    for k2 in range(2):
                        rds.append((RA0 if k2 == 0 else RA1, 512 * half, R + 8 * (2 * b + half) + 4 * k2))
                gl.append((pcs, rds))
            for tq in range(4):
                pcs = [(SH, PH + h, 66 + tq) for h in range(2)]
                rds = [(RS0, 0, R + 32 + 8 * tq), (RS1, 0, R + 32 + 8 * tq + 4)]
                gl.append((pcs, rds))
        else:
            specs = [(SAB, PB, 72), (SAB, PB, 73), (SWR, PW, 70), (SWR, PW, 71), (SAB, PBR, 74), (SAB, PBR, 75), (SWI, PW, 70), (SWI, PW, 71)]
            for gi, (srd, pv, sb) in enumerate(specs):
                pcs = [(srd, pv + h, sb) for h in range(2)]
                rds = [(RS0, 0, R + 8 * gi), (RS1, 0, R + 8 * gi + 4)]
                gl.append((pcs, rds))
        return gl
    allg = []
    pend = []
    slot = 0
    for si in range(len(stages)):
        for gi, (pcs, rds) in enumerate(groups_of(si)):
            allg.append((si, gi, pcs, rds, slot % 32)); slot += len(pcs); pend.append(slot)
    dma_last = {}
    def issue_group(gidx):
        si, gi, pcs, rds, s0 = allg[gidx]
        kind, k = stages[si]
        for pn, (srd, pv, sb) in enumerate(pcs):
            e(f"s_add_u32 m0, s63, {(s0+pn)*1024}")
            if pn == 0:
                e(f"s_add_u32 s76, s{sb}, {128*k}")
            dma_last[gidx] = e.vm(f"buffer_load_dwordx4 v{pv}, {sr(srd)}, s76 offen lds")
    direct_last = {}
    def issue_direct(si):
        kind, k = stages[si]
        if kind != "D": return
        R = SETR[si % 2] + 64
        for mi, (srd, vo) in enumerate([(SAB, 26), (SWR, 28), (SAB, 27), (SWI, 28)]):
            for k2 in range(2):
                direct_last[si] = e.vm(f"buffer_load_dwordx4 {vr(R+8*mi+4*k2)}, v{vo}, {sr(srd)}, 0 offen offset:{128*k+64*k2}")
    def mfmas(si):
        if si < 0:
            return [f"v_mfma_f32_16x16x32_bf16 {ar(cacc(qa,qb))}, {vr(XR+4*qa)}, {vr(XR+12+4*qb)}, {ar(cacc(qa,qb))}" for qa in range(3) for qb in range(3)], []
        kind, k = stages[si]
        R = SETR[si % 2]
        early, late = [], []
        if kind == "Z":
            for k2 in range(2):
                for q in range(4):
                    for tq in range(4):
                        early.append(f"v_mfma_f32_16x16x32_bf16 {ar(zacc(q,tq))}, {vr(R+8*q+4*k2)}, {vr(R+32+8*tq+4*k2)}, {ar(zacc(q,tq))}")
        else:
            def areg(mat, q, k2):
                return (R + 32 * mat + 8 * q + 4 * k2) if q < 2 else (R + 64 + 16 * mat + 4 * k2)
            def breg(mat, q, k2):
                return (R + 32 * mat + 16 + 8 * q + 4 * k2) if q < 2 else (R + 64 + 16 * mat + 8 + 4 * k2)
            for k2 in range(2):
                for mat in range(2):
                    fa = cacc if mat == 0 else sacc
                    for qa in range(3):
                        for qb in range(3):
                            s = f"v_mfma_f32_16x16x32_bf16 {ar(fa(qa,qb))}, {vr(areg(mat,qa,k2))}, {vr(breg(mat,qb,k2))}, {ar(fa(qa,qb))}"
                            (late if (qa == 2 or qb == 2) else early).append(s)
        return early, late
    gstart = {}
    for gidx, g in enumerate(allg):
        gstart.setdefault(g[0], gidx)
    nissued = 0
    pieces_issued = 0
    while nissued < len(allg) and pieces_issued + len(allg[nissued][2]) <= 32:
        issue_group(nissued); pieces_issued += len(allg[nissued][2]); nissued += 1
    issue_direct(0)
    for a in range(NACC):
        e(f"v_accvgpr_write_b32 a{a}, 0")
    stamp(e, 1)
    freed_q = []
    for si in range(len(stages) + 1):
        early, late = mfmas(si - 1)
        if si == 0:
            e.wait_vm(xops[-1])
        if si < len(stages):
            gids = [g for g in range(len(allg)) if allg[g][0] == si]
            per = -(-len(early) // len(gids))
            for n, g in enumerate(gids):
                _, _, pcs, rds, s0 = allg[g]
                e.wait_vm(dma_last[g])
                for (areg_, off, dst) in rds:
                    e(f"ds_read_b128 {vr(dst)}, v{areg_} offset:{s0*1024 + off}")
                for m in early[n*per:(n+1)*per]:
                    e(m)
                if n > 0:
                    freed = pend[g - 1]
                    if nissued < len(allg) and pend[nissued] <= freed + 32:
                        e(f"s_waitcnt lgkmcnt({len(rds)})")
                        while nissued < len(allg) and pend[nissued] <= freed + 32:
                            issue_group(nissued); nissued += 1
            e("s_waitcnt lgkmcnt(0)")
            freed = pend[gids[-1]]
            while nissued < len(allg) and pend[nissued] <= freed + 32:
                issue_group(nissued); nissued += 1
            if late:
                e.wait_vm(direct_last[si - 1])
                for m in late: e(m)
            if si + 1 < len(stages):
                issue_direct(si + 1)
        else:
            for m in early: e(m)
            if late:
                e.wait_vm(direct_last[si - 1])
                for m in late: e(m)
        if si == 4: stamp(e, 2)
    stamp(e, 3)
    e("s_barrier")
    e("v_lshlrev_b32 v4, 4, v3")
    e(f"v_mul_u32_u24 v40, {PM_PITCH}, v2")
    e("v_lshl_add_u32 v40, v3, 4, v40")
    e(f"s_mul_i32 s63, s21, {PM_WAVE}")
    e("v_add_u32 v40, s63, v40")
    e("s_and_b32 s59, s20, 7")
    e("s_cmp_eq_u32 s59, 0")
    e("s_cselect_b64 s[58:59], 0xffff, 0")
    e("v_mov_b32 v39, 0")
    e("s_mov_b32 s56, 0x00010001")
    e("s_mov_b32 s57, 0x00010001")
    for qa in range(3):
        for qb in range(3):
            T0 = 64 + 12 * ((3 * qa + qb) % 4)
            for r in range(4):
                e(f"v_accvgpr_read_b32 v{T0+r}, a{cacc(qa,qb)+r}")
                e(f"v_accvgpr_read_b32 v{T0+4+r}, a{sacc(qa,qb)+r}")
            if qa == 0:
                e(f"v_cndmask_b32 v{T0+4}, v{T0+4}, v39, s[58:59]")
            for r in range(4):
                e(f"v_add_f32 v{T0+8+r}, v{T0+r}, v{T0+4+r}")
                e(f"v_sub_f32 v{T0+4+r}, v{T0+r}, v{T0+4+r}")
            off = PMBASE + 16 * qb * PM_PITCH + 64 * qa
            if qa == 2 and qb == 2:
                e("s_mov_b64 exec, 1")
            elif qa == 2:
                e("s_mov_b64 exec, 0xffff")
            elif qb == 2:
                e("s_mov_b64 exec, s[56:57]")
            e(f"ds_write_b128 v40, {vr(T0+8)} offset:{off}")
            e(f"ds_write_b128 v40, {vr(T0+4)} offset:{off+PM_MAT}")
            if qa == 2 or qb == 2:
                e("s_mov_b64 exec, -1")
    e("v_lshlrev_b32 v41, 4, v0")
    e(f"v_add_u32 v41, {ZXBASE}, v41")
    for w in range(4):
        e(f"s_cmp_lg_u32 s21, {w}")
        e(f"s_cbranch_scc1 KB_ZW_{w}")
        for d in range(4):
            if d == w: continue
            si = (w - d - 1) % 4
            for tl in range(4):
                q = 2 * (d & 1) + (tl & 1); tq = 2 * (d >> 1) + (tl >> 1)
                e(f"ds_write_b128 v41, {ar(zacc(q,tq))} offset:{(d*3+si)*4096 + tl*1024}")
        for tl in range(4):
            q = 2 * (w & 1) + (tl & 1); tq = 2 * (w >> 1) + (tl >> 1)
            for r in range(4):
                e(f"v_accvgpr_read_b32 v{128+4*tl+r}, a{zacc(q,tq)+r}")
        e.label(f"KB_ZW_{w}")
    e("s_and_b32 s64, s21, 1")
    e("s_lshr_b32 s65, s21, 1")
    e("s_cmp_eq_u32 s64, 0")
    e("s_cselect_b32 s66, s53, s55")
    e("s_cmp_eq_u32 s65, 0")
    e("s_cselect_b32 s67, s52, s54")
    e("v_add_u32 v42, s67, v2")
    e("v_lshlrev_b32 v42, 10, v42")
    e("v_lshl_add_u32 v42, v3, 4, v42")
    e("s_lshl_b32 s66, s66, 1")
    e("v_add_u32 v42, s66, v42")
    e(f"buffer_load_dwordx4 v[144:147], v42, {sr(SX)}, 0 offen")
    e("v_add_u32 v43, 0x4000, v42")
    e(f"buffer_load_dwordx4 v[148:151], v43, {sr(SX)}, 0 offen")
    e("s_waitcnt lgkmcnt(0)")
    e("s_barrier")
    e("s_mul_i32 s63, s21, 12288")
    e("v_add_u32 v41, s63, v41")
    for si in range(3):
        for tl in range(4):
            e(f"ds_read_b128 {vr(64+16*si+4*tl)}, v41 offset:{si*4096 + tl*1024}")
    e("s_waitcnt lgkmcnt(0)")
    for tl in range(4):
        for r in range(4):
            e(f"v_add_f32 v{128+4*tl+r}, v{128+4*tl+r}, v{64+4*tl+r}")
            e(f"v_add_f32 v{80+4*tl+r}, v{80+4*tl+r}, v{96+4*tl+r}")
            e(f"v_add_f32 v{128+4*tl+r}, v{128+4*tl+r}, v{80+4*tl+r}")
    e("s_xor_b32 s63, s64, s65")
    e(f"s_mul_i32 s63, s63, {PM_MAT}")
    e("v_lshlrev_b32 v44, 3, v3")
    e("v_sub_u32 v45, 25, v44")
    e("s_cmp_eq_u32 s64, 0")
    e("s_cselect_b64 vcc, -1, 0")
    e("v_cndmask_b32 v44, v45, v44, vcc")
    e("v_sub_u32 v45, 32, v2")
    e("s_cmp_eq_u32 s65, 0")
    e("s_cselect_b64 vcc, -1, 0")
    e("v_cndmask_b32 v45, v45, v2, vcc")
    e(f"v_mul_u32_u24 v45, {PM_PITCH}, v45")
    e("v_lshl_add_u32 v44, v44, 2, v45")
    e("v_add_u32 v44, s63, v44")
    e(f"s_cmp_eq_u32 s65, 0")
    e(f"s_mov_b32 s68, {16*PM_PITCH}")
    e(f"s_mov_b32 s69, {-16*PM_PITCH}")
    e("s_cselect_b32 s63, s68, s69")
    e("v_add_u32 v45, s63, v44")
    for tq in range(2):
        for pw in range(4):
            for k in range(2):
                e(f"ds_read_b128 {vr(64 + 32*tq + 8*pw + 4*k)}, v{44+tq} offset:{PMBASE + pw*PM_WAVE + 16*k}")
        e("s_waitcnt lgkmcnt(0)")
        for k in range(8):
            b = 64 + 32 * tq
            e(f"v_add_f32 v{b+k}, v{b+k}, v{b+8+k}")
            e(f"v_add_f32 v{b+16+k}, v{b+16+k}, v{b+24+k}")
            e(f"v_add_f32 v{b+k}, v{b+k}, v{b+16+k}")
    e("s_waitcnt vmcnt(0)")
    for wc in range(2):
        e(f"s_cmp_lg_u32 s64, {wc}")
        e(f"s_cbranch_scc1 KB_FIN_{wc}")
        for tq in range(2):
            for half in range(2):
                tl = half + 2 * tq
                for r in range(4):
                    k8 = 4 * half + r
                    yi = 64 + 32 * tq + (7 - k8 if wc else k8)
                    zr = 128 + 4 * tl + r
                    xr = 144 + 4 * tq + (k8 >> 1)
                    e(f"v_add_f32 v{zr}, v{zr}, v{yi}")
                    if k8 & 1:
                        e(f"v_and_b32 v46, 0xffff0000, v{xr}")
                    else:
                        e(f"v_lshlrev_b32 v46, 16, v{xr}")
                    e(f"v_add_f32 v{zr}, v{zr}, v46")
            for d in range(4):
                tl = (d >> 1) + 2 * tq
                z0 = 128 + 4 * tl + 2 * (d & 1)
                e(f"v_cvt_pk_bf16_f32 v{152+4*tq+d}, v{z0}, v{z0+1}")
        e.label(f"KB_FIN_{wc}")
    e("s_nop 1")
    e(f"buffer_store_dwordx4 v[152:155], v42, {sr(SO)}, 0 offen")
    e(f"buffer_store_dwordx4 v[156:159], v43, {sr(SO)}, 0 offen")
    if PROF:
        e("s_waitcnt vmcnt(0)")
    stamp(e, 4)
    stamps_out(e, 1, 5, 16, 17)
    e.label("KB_END")
    e("s_endpgm")
    return e.text(), 256 + NACC

HEADER = open("parallel_sum__spectral_fnet__dense_activation_relu__prompt.s.ref").read().split("; Override launch")[0]

def main(out):
    ka, ka_v = gen_ka()
    kb, kb_v = gen_kb()
    t = HEADER
    t += f"; @launch kernel=fnet_ka_kernel grid=(256,1,1) block=(256,1,1) lds={KA_LDS}\n"
    t += f"; @launch kernel=fnet_kb_kernel grid=(256,1,1) block=(256,1,1) lds={KB_LDS}\n"
    t += '.amdgcn_target "amdgcn-amd-amdhsa--gfx950"\n.text\n'
    for name, body in (("fnet_ka_kernel", ka), ("fnet_kb_kernel", kb)):
        t += f".globl {name}\n.p2align 8\n.type {name},@function\n" + body
    t += '.section .rodata,"a"\n'
    for name, nv in (("fnet_ka_kernel", ka_v), ("fnet_kb_kernel", kb_v)):
        t += f""".p2align 6
.amdhsa_kernel {name}
  .amdhsa_next_free_vgpr {nv}
  .amdhsa_next_free_sgpr 96
  .amdhsa_accum_offset 256
  .amdhsa_group_segment_fixed_size 0
  .amdhsa_kernarg_size 88
  .amdhsa_user_sgpr_count 2
  .amdhsa_user_sgpr_kernarg_segment_ptr 1
  .amdhsa_system_sgpr_workgroup_id_x 1
.end_amdhsa_kernel
"""
    open(out, "w").write(t)

if __name__ == "__main__":
    main(sys.argv[1] if len(sys.argv) > 1 else "parallel_sum__spectral_fnet__dense_activation_relu__prompt.s")
```

```python
import sys, os, re

S, D, F = 2048, 512, 1792
H_OFF, ABT_OFF, W2T_OFF = 0, 0x800000, 0xA00000
H_BYTES = S * F * 2
ABT_PITCH = 2176
ABT_BYTES = 512 * ABT_PITCH
W2T_BYTES = 512 * F * 2
OOB = 0x40000000
PROF = int(os.environ.get("PROF", "0"))
PROF_OFF = 0x4000000

class Emit:
    def __init__(self):
        self.lines = []
        self.nvm = 0
    def __call__(self, s=""):
        m = re.search(r"offset:(-?\d+)", s)
        if m:
            o = int(m.group(1))
            if s.lstrip().startswith("buffer_"): assert 0 <= o <= 4095, s
            if s.lstrip().startswith("ds_"): assert 0 <= o <= 65535, s
        self.lines.append("    " + s if s and not s.endswith(":") else s)
    def vm(self, s):
        if s.endswith(" lds") and self.lines and " m0," in self.lines[-1]:
            self("s_nop 0")
        self(s)
        self.nvm += 1
        return self.nvm - 1
    def wait_vm(self, idx):
        n = self.nvm - idx - 1
        if n <= 62:
            self(f"s_waitcnt vmcnt({n})")
    def label(self, s):
        self.lines.append(s + ":")
    def text(self):
        return "\n".join(self.lines) + "\n"

def stamp(e, k):
    if PROF:
        e(f"s_memtime s[{80+2*k}:{81+2*k}]")
        if k == 0: e("s_memrealtime s[92:93]")
        e("s_waitcnt lgkmcnt(0)")
def stamps_out(e, kidx, nst, wslo, wshi):
    if not PROF: return
    e("s_memrealtime s[94:95]")
    e("s_waitcnt lgkmcnt(0)")
    e(f"s_add_u32 s76, s{wslo}, {PROF_OFF}")
    e(f"s_addc_u32 s77, s{wshi}, 0")
    e("s_and_b32 s77, s77, 0xffff")
    e(f"s_mov_b32 s78, {2*256*4*64}")
    e("s_mov_b32 s79, 0x00020000")
    e(f"s_add_u32 s74, s2, {kidx*256}")
    e("s_lshl_b32 s74, s74, 2")
    e("s_add_u32 s74, s74, s21")
    e("s_lshl_b32 s74, s74, 6")
    e("s_mov_b64 s[70:71], exec")
    e("s_mov_b64 exec, 1")
    e("v_mov_b32 v200, 0")
    for k in range(nst):
        e(f"v_mov_b32 v202, s{80+2*k}")
        e(f"v_mov_b32 v203, s{81+2*k}")
        e(f"buffer_store_dwordx2 v[202:203], v200, s[76:79], s74 offen offset:{8*k}")
    for k in (6, 7):
        e(f"v_mov_b32 v202, s{80+2*k}")
        e(f"v_mov_b32 v203, s{81+2*k}")
        e(f"buffer_store_dwordx2 v[202:203], v200, s[76:79], s74 offen offset:{8*k}")
    e("s_mov_b64 exec, s[70:71]")

def vr(base, n=4): return f"v[{base}:{base+n-1}]"
def ar(base, n=4): return f"a[{base}:{base+n-1}]"
def sr(base, n=4): return f"s[{base}:{base+n-1}]"

def make_srd(e, dst, lo, hi, nbytes, add=0):
    if add:
        e(f"s_add_u32 s{dst}, s{lo}, {add}")
        e(f"s_addc_u32 s{dst+1}, s{hi}, 0")
    else:
        e(f"s_mov_b32 s{dst}, s{lo}")
        e(f"s_mov_b32 s{dst+1}, s{hi}")
    e(f"s_and_b32 s{dst+1}, s{dst+1}, 0xffff")
    e(f"s_mov_b32 s{dst+2}, {nbytes}")
    e(f"s_mov_b32 s{dst+3}, 0x00020000")

WPBASE = 0
WPPITCH = 1056
STG0 = 32 * WPPITCH
STGSZ = 30720
XOFF, W1OFF = 0, 16384
NSTG = 4
TBASE = STG0 + NSTG * STGSZ
KA_LDS = TBASE + 7168

def gen_ka():
    e = Emit()
    e.label("fnet_ka_kernel")
    e("s_cmp_ge_u32 s2, 256")
    e("s_cbranch_scc1 KA_END")
    e("s_load_dwordx2 s[4:5], s[0:1], 0")
    e("s_load_dwordx4 s[12:15], s[0:1], 48")
    e("s_load_dwordx4 s[8:11], s[0:1], 24")
    e("s_load_dwordx2 s[16:17], s[0:1], 80")
    e("s_load_dwordx4 s[76:79], s[0:1], 8")
    e("s_and_b32 s3, s2, 7")
    e("s_lshr_b32 s18, s2, 3")
    e("s_and_b32 s19, s3, 3")
    e("s_lshl_b32 s19, s19, 2")
    e("s_and_b32 s20, s18, 3")
    e("s_add_u32 s19, s19, s20")
    e("s_lshr_b32 s20, s3, 2")
    e("s_lshl_b32 s20, s20, 3")
    e("s_lshr_b32 s21, s18, 2")
    e("s_add_u32 s20, s20, s21")
    e("v_lshrrev_b32 v1, 6, v0")
    e("v_and_b32 v0, 63, v0")
    e("v_and_b32 v2, 15, v0")
    e("v_readfirstlane_b32 s21, v1")
    e("v_lshrrev_b32 v3, 4, v0")
    SX, SW1, SWPA, SWPB, SW2, SH, SAB, SW2T = 24, 28, 32, 36, 40, 44, 48, 52
    e("s_mov_b32 s61, 3584")
    e("s_lshl_b32 s22, s19, 6")
    e("s_lshl_b32 s23, s21, 4")
    e("s_add_u32 s22, s22, s23")
    XV = 12
    e("v_lshrrev_b32 v20, 3, v0")
    e("v_lshrrev_b32 v21, 4, v0")
    e("v_and_b32 v22, 7, v0")
    e("v_mov_b32 v6, 0x400")
    for h in range(2):
        e(f"v_add_u32 v23, {8*h}, v20")
        e("v_add_u32 v23, s22, v23")
        e(f"v_xor_b32 v24, {4*h}, v21")
        e("v_xor_b32 v24, v22, v24")
        e("v_lshlrev_b32 v24, 4, v24")
        e(f"v_lshl_add_u32 v{XV+h}, v23, 10, v24")
        e("v_sub_u32 v25, 0x800, v23")
        e("v_cmp_eq_u32 vcc, 0, v23")
        e("s_nop 1")
        e("v_cndmask_b32 v25, v25, v6, vcc")
        e(f"v_lshl_add_u32 v{XV+2+h}, v25, 10, v24")
    W1V = 16
    e("s_mul_i32 s59, s20, 224")
    e("s_mov_b32 s60, 4682")
    e("s_and_b32 s62, s21, 1")
    e("s_add_u32 s62, s62, 12")
    for n in range(4):
        z, p, cc, k, t1, t2 = 28, 29, 30, 31, 32, 33
        if n < 3:
            e(f"s_add_u32 s63, s21, {4*n}")
        else:
            e("s_mov_b32 s63, s62")
        e("s_lshl_b32 s63, s63, 6")
        e(f"v_add_u32 v{z}, s63, v0")
        e(f"v_mul_lo_u32 v{p}, v{z}, s60")
        e(f"v_lshrrev_b32 v{p}, 16, v{p}")
        e(f"v_mul_u32_u24 v{cc}, 14, v{p}")
        e(f"v_sub_u32 v{cc}, v{z}, v{cc}")
        e(f"v_and_b32 v{k}, 0x33, v{p}")
        e(f"v_and_b32 v{t1}, 4, v{p}")
        e(f"v_lshlrev_b32 v{t1}, 1, v{t1}")
        e(f"v_and_b32 v{t2}, 8, v{p}")
        e(f"v_lshrrev_b32 v{t2}, 1, v{t2}")
        e(f"v_or3_b32 v{k}, v{k}, v{t1}, v{t2}")
        e(f"v_mul_lo_u32 v{k}, v{k}, s61")
        e(f"v_lshl_add_u32 v{k}, v{cc}, 4, v{k}")
        e(f"v_add_u32 v{W1V+n}, s59, v{k}")
    e("s_cmp_lt_u32 s21, 2")
    e("s_cselect_b64 s[68:69], -1, 1")
    e("s_lshl_b32 s72, s21, 12")
    e("s_lshl_b32 s73, s21, 10")
    e("s_lshl_b32 s67, s62, 10")
    e("s_lshr_b32 s75, s2, 3")
    e("s_waitcnt lgkmcnt(0)")
    stamp(e, 0)
    make_srd(e, SX, 4, 5, S * D * 2)
    make_srd(e, SW1, 12, 13, D * F * 2)
    stage_last = {}
    def stage_ops(st):
        buf = STG0 + (st % NSTG) * STGSZ
        ops = []
        def mk_x(t, h):
            def f():
                e(f"s_mov_b32 s63, {128*st}")
                e(f"s_add_u32 m0, s72, {buf + XOFF + (2*t+h)*1024}")
                e.vm(f"buffer_load_dwordx4 v{XV+2*t+h}, {sr(SX)}, s63 offen lds")
            return f
        def mk_w(n):
            def f():
                e(f"s_mov_b32 s63, {st*64*3584}")
                if n < 3:
                    e(f"s_add_u32 m0, s73, {buf + W1OFF + n*4096}")
                else:
                    e(f"s_add_u32 m0, s67, {buf + W1OFF}")
                    e("s_mov_b64 exec, s[68:69]")
                stage_last[st] = e.vm(f"buffer_load_dwordx4 v{W1V+n}, {sr(SW1)}, s63 offen lds")
                if n == 3:
                    e("s_mov_b64 exec, -1")
            return f
        for t in range(2):
            for h in range(2):
                ops.append(mk_x(t, h))
        for n in range(4):
            ops.append(mk_w(n))
        return ops
    def issue_stage(st):
        for f in stage_ops(st): f()
    pend_dma = []
    issue_stage(0)
    e("s_cmp_lt_u32 s20, 8")
    e(f"s_cselect_b32 s{SWPB}, s8, s10")
    e(f"s_cselect_b32 s{SWPB+1}, s9, s11")
    e(f"s_and_b32 s{SWPB+1}, s{SWPB+1}, 0xffff")
    e(f"s_mov_b32 s{SWPB+2}, {D*D*2}")
    e(f"s_mov_b32 s{SWPB+3}, 0x00020000")
    e("s_cmp_eq_u32 s21, 0")
    e("s_cselect_b32 s58, 9, 8")
    e("s_cmp_lt_u32 s20, s58")
    e(f"s_cselect_b32 s{SWPA}, s8, s10")
    e(f"s_cselect_b32 s{SWPA+1}, s9, s11")
    e(f"s_and_b32 s{SWPA+1}, s{SWPA+1}, 0xffff")
    e(f"s_mov_b32 s{SWPA+2}, {D*D*2}")
    e(f"s_mov_b32 s{SWPA+3}, 0x00020000")
    e("s_lshl_b32 s23, s20, 5")
    e("s_lshl_b32 s56, s21, 3")
    e("s_add_u32 s23, s23, s56")
    e("s_lshl_b32 s23, s23, 10")
    e("v_lshlrev_b32 v10, 4, v0")
    e(f"s_mul_i32 s57, s56, {WPPITCH}")
    e(f"s_add_u32 s57, s57, {WPBASE}")
    for rr in range(8):
        e(f"s_add_u32 m0, s57, {rr*WPPITCH}")
        e(f"s_add_u32 s58, s23, {rr*1024}")
        wp_last = e.vm(f"buffer_load_dwordx4 v10, {sr(SWPA if rr==0 else SWPB)}, s58 offen lds")
    issue_stage(1)
    stage_last[0] = wp_last
    make_srd(e, SW2, 14, 15, F * D * 2)
    e("v_lshrrev_b32 v26, 2, v0")
    e("v_and_b32 v27, 3, v0")
    e("v_lshlrev_b32 v27, 4, v27")
    e("v_lshl_add_u32 v26, v26, 10, v27")
    e("s_mul_i32 s64, s20, 112")
    e("s_lshl_b32 s65, s21, 4")
    e("s_add_u32 s64, s64, s65")
    e("s_lshl_b32 s64, s64, 10")
    e("s_lshl_b32 s65, s19, 6")
    e("s_add_u32 s64, s64, s65")
    w2box = {}
    def w2_issue():
        e(f"s_add_u32 m0, s73, {TBASE}")
        w2box[0] = e.vm(f"buffer_load_dwordx4 v26, {sr(SW2)}, s64 offen lds")
        e("s_cmp_eq_u32 s21, 3")
        e("s_cbranch_scc1 KA_NOW2")
        e(f"s_add_u32 m0, s73, {TBASE + 4096}")
        e(f"s_add_u32 s66, s64, {64*1024}")
        e("s_nop 0")
        e(f"buffer_load_dwordx4 v26, {sr(SW2)}, s66 offen lds")
        e.label("KA_NOW2")
    stamp(e, 1)
    make_srd(e, SH, 16, 17, H_BYTES, H_OFF)
    make_srd(e, SAB, 16, 17, ABT_BYTES, ABT_OFF)
    make_srd(e, SW2T, 16, 17, W2T_BYTES, W2T_OFF)
    ONES = 92
    for r in range(4):
        e(f"v_mov_b32 v{ONES+r}, 0x3f803f80")
    for a in range(52):
        e(f"v_accvgpr_write_b32 a{a}, 0")
    def csa(q): return 4 * q
    def sma(t): return 36 + 4 * t
    def sqa(t): return 44 + 4 * t
    e("v_add_u32 v4, s22, v2")
    e("v_sub_u32 v5, 0x800, v4")
    e("v_cmp_eq_u32 vcc, 0, v4")
    e("s_nop 1")
    e("v_cndmask_b32 v5, v5, v6, vcc")
    e("v_lshrrev_b32 v44, 1, v3")
    e("v_lshlrev_b32 v44, 4, v44")
    e("v_and_b32 v45, 1, v3")
    e("v_lshl_add_u32 v44, v45, 2, v44")
    e("v_lshrrev_b32 v45, 2, v2")
    e("v_add_u32 v44, v44, v45")
    e("v_mul_u32_u24 v44, 224, v44")
    e("v_and_b32 v45, 3, v0")
    e("v_lshl_add_u32 v44, v45, 3, v44")
    e("v_lshrrev_b32 v45, 1, v2")
    e("v_xor_b32 v45, v45, v3")
    e("v_lshlrev_b32 v45, 4, v45")
    e("v_lshl_add_u32 v45, v2, 7, v45")
    e("v_add_u32 v45, s72, v45")
    e("v_xor_b32 v43, 64, v45")
    e(f"v_mul_u32_u24 v46, {WPPITCH}, v2")
    e("v_lshl_add_u32 v46, v3, 4, v46")
    e(f"v_add_u32 v46, {WPBASE}, v46")
    ACC = 176
    for a in range(72):
        e(f"v_mov_b32 v{ACC+a}, 0")
    def acc(q, t): return ACC + (2 * q + t) * 4
    e("v_and_b32 v47, 1, v3")
    e("v_lshlrev_b32 v47, 3, v47")
    e("v_lshrrev_b32 v48, 2, v2")
    e("v_add_u32 v47, v47, v48")
    e("v_lshlrev_b32 v47, 6, v47")
    e("v_lshrrev_b32 v48, 1, v3")
    e("v_lshl_add_u32 v47, v48, 5, v47")
    e("v_and_b32 v48, 3, v0")
    e("v_lshl_add_u32 v47, v48, 3, v47")
    e("v_add_u32 v47, s73, v47")
    e(f"v_add_u32 v47, {TBASE}, v47")
    HA = (61, 64)
    e("s_mul_i32 s65, s20, 224")
    for t in range(2):
        e(f"v_mul_lo_u32 v{HA[t]}, v{4+t}, s61")
        e(f"v_lshl_add_u32 v{HA[t]}, v3, 3, v{HA[t]}")
        e(f"v_add_u32 v{HA[t]}, s65, v{HA[t]}")
    e("v_lshlrev_b32 v80, 4, v3")
    for r in range(4):
        e(f"v_add_u32 v{81+r}, {4*r}, v80")
    e("v_mov_b32 v62, 0")
    e("v_mov_b32 v63, 1.0")
    e("v_mov_b32 v68, -1.0")
    e("s_lshl_b32 s65, s20, 5")
    e("v_add_u32 v65, s65, v2")
    e(f"s_mov_b32 s66, {ABT_PITCH}")
    e("v_mul_lo_u32 v66, v65, s66")
    e("v_add_u32 v67, 0x800, v66")
    e("v_lshl_add_u32 v85, v3, 2, s22")
    e("v_lshl_add_u32 v66, v85, 1, v66")
    e("v_cmp_ne_u32 vcc, 0, v85")
    e("s_nop 1")
    e("v_cndmask_b32 v86, v62, v63, vcc")
    PFA, PFB = 4, 8
    e("s_lshl_b32 s23, s2, 2")
    e("s_add_u32 s23, s23, s21")
    e("s_lshl_b32 s23, s23, 12")
    def pf_issue():
        make_srd(e, PFA, 76, 77, S * S * 2)
        make_srd(e, PFB, 78, 79, S * S * 2)
        for srd in (PFA, PFB):
            for hh in range(2):
                e.vm(f"buffer_load_dwordx4 v[72:75], v10, {sr(srd)}, s23 offen offset:{1024*hh}")
    WF = 96; NSL = 10
    XFR = 136
    TRA, XA0, XA1 = 58, 59, 60
    LA = 8
    seq = []
    for st in range(8):
        for k2 in range(2):
            seq.append(("x", st, k2, 0)); seq.append(("x", st, k2, 1))
            for q in range(9):
                seq.append(("w", st, k2, q))
    def xreg(st, k2, t): return XFR + 8 * ((2 * st + k2) % 4) + 4 * t
    wslot = {}
    cnt = [0]
    def pre_stage(st):
        buf = STG0 + (st % NSTG) * STGSZ
        while st not in stage_last:
            pend_dma.pop(0)()
        e.wait_vm(stage_last[st])
        e("s_barrier")
        if st == 0: stamp(e, 2)
        if st == 0:
            pend_dma.extend(stage_ops(2)); pend_dma.extend(stage_ops(3))
        if 2 <= st and st + 2 < 8:
            pend_dma.extend(stage_ops(st + 2))
        if st == 6:
            pend_dma.append(w2_issue)
        if st == 7 and not os.environ.get("NOPF"):
            pend_dma.append(pf_issue)
        e(f"v_add_u32 v{TRA}, {buf + W1OFF}, v44")
        e(f"v_add_u32 v{XA0}, {buf + XOFF}, v45")
        e(f"v_add_u32 v{XA1}, {buf + XOFF}, v43")
    def issue(m):
        kind, st, k2, q = seq[m]
        if kind == "x" and k2 == 0 and q == 0:
            pre_stage(st)
        if kind == "x":
            e(f"ds_read_b128 {vr(xreg(st,k2,q))}, v{XA0 if k2==0 else XA1} offset:{2048*q}")
            return
        sl = WF + 4 * (cnt[0] % NSL); cnt[0] += 1
        wslot[(st, k2, q)] = sl
        if q < 7:
            off = 7168 * k2 + 32 * q
            e(f"ds_read_b64_tr_b16 v[{sl}:{sl+1}], v{TRA} offset:{off}")
            e(f"ds_read_b64_tr_b16 v[{sl+2}:{sl+3}], v{TRA} offset:{off+1792}")
        else:
            e(f"ds_read_b128 {vr(sl)}, v46 offset:{16*WPPITCH*(q-7) + 64*(2*st+k2)}")
    nrd = [1 if (it[0] == "x" or it[3] >= 7) else 2 for it in seq]
    for n in range(LA):
        issue(n)
    for n, it in enumerate(seq):
        if n + LA < len(seq):
            issue(n + LA)
        out = sum(nrd[n + 1: min(len(seq), n + LA + 1)])
        kind, st, k2, q = it
        if kind == "x":
            continue
        e(f"s_waitcnt lgkmcnt({min(out,15)})")
        sl = wslot[(st, k2, q)]
        for t in range(2):
            if q < 7:
                e(f"v_mfma_f32_16x16x32_bf16 {vr(acc(q,t))}, {vr(sl)}, {vr(xreg(st,k2,t))}, {vr(acc(q,t))}")
            else:
                e(f"v_mfma_f32_16x16x32_bf16 {vr(acc(q,t))}, {vr(xreg(st,k2,t))}, {vr(sl)}, {vr(acc(q,t))}")
        if q < 7:
            e(f"v_mfma_f32_16x16x32_bf16 {ar(csa(q))}, {vr(sl)}, {vr(ONES)}, {ar(csa(q))}")
        else:
            e(f"v_mfma_f32_16x16x32_bf16 {ar(csa(q))}, {vr(ONES)}, {vr(sl)}, {ar(csa(q))}")
        if q in (1, 5):
            t_ = q >> 2
            e(f"v_mfma_f32_16x16x32_bf16 {ar(sma(t_))}, {vr(ONES)}, {vr(xreg(st,k2,t_))}, {ar(sma(t_))}")
        if q in (3, 7):
            t_ = q >> 2
            e(f"v_mfma_f32_16x16x32_bf16 {ar(sqa(t_))}, {vr(xreg(st,k2,t_))}, {vr(xreg(st,k2,t_))}, {ar(sqa(t_))}")
        if pend_dma and (q % 2 == 0 or len(pend_dma) > 6):
            pend_dma.pop(0)()
    assert not pend_dma
    stamp(e, 3)
    W2R = 50
    e.wait_vm(w2box[0])
    for n in range(2):
        for h in range(2):
            e(f"ds_read_b64_tr_b16 v[{W2R+4*n+2*h}:{W2R+1+4*n+2*h}], v47 offset:{4096*n + 256*h}")
    SUM, SQ = 42, 44
    e("v_and_b32 v96, 3, v2")
    e("v_lshrrev_b32 v97, 2, v2")
    e("v_lshl_add_u32 v97, v97, 4, v2")
    e("v_lshlrev_b32 v97, 2, v97")
    for t in range(2):
        e(f"v_accvgpr_read_b32 v{SUM+t}, a{sma(t)}")
        for r in range(4):
            e(f"v_accvgpr_read_b32 v{100+4*t+r}, a{sqa(t)+r}")
    for r in range(1, 4):
        e(f"v_cmp_eq_u32 vcc, {r}, v96")
        e("s_nop 1")
        for t in range(2):
            e(f"v_cndmask_b32 v{100+4*t}, v{100+4*t}, v{100+4*t+r}, vcc")
    for t in range(2):
        e(f"ds_bpermute_b32 v{SQ+t}, v97, v{100+4*t}")
    CSV = 116
    for q in range(9):
        for r in range(4):
            e(f"v_accvgpr_read_b32 v{CSV+4*q+r}, a{csa(q)+r}")
    e("s_waitcnt lgkmcnt(0)")
    e("v_lshrrev_b32 v48, 1, v3")
    e("v_lshl_add_u32 v48, v48, 4, v2")
    e("s_lshl_b32 s65, s19, 5")
    e("v_add_u32 v48, s65, v48")
    e("v_mul_lo_u32 v48, v48, s61")
    e("v_and_b32 v49, 1, v3")
    e("v_lshl_add_u32 v48, v49, 4, v48")
    e("s_mul_i32 s65, s20, 224")
    e("s_lshl_b32 s66, s21, 5")
    e("s_add_u32 s65, s65, s66")
    e("v_add_u32 v48, s65, v48")
    e(f"buffer_store_dwordx4 v[{W2R}:{W2R+3}], v48, {sr(SW2T)}, 0 offen")
    e("s_cmp_eq_u32 s21, 3")
    e("s_cbranch_scc1 KA_NOT2")
    e(f"buffer_store_dwordx4 v[{W2R+4}:{W2R+7}], v48, {sr(SW2T)}, 0 offen offset:128")
    e.label("KA_NOT2")
    NM, RP = 104, 108
    MB = 112
    e("s_mov_b32 s67, 0x3b000000")
    e("s_mov_b32 s68, 0x3727c5ac")
    for t in range(2):
        a, b = 96 + t, 98 + t
        e(f"v_mul_f32 v{a}, s67, v{SUM+t}")
        e(f"v_mul_f32 v{b}, s67, v{SQ+t}")
        e(f"v_fma_f32 v{b}, -v{a}, v{a}, v{b}")
        e(f"v_max_f32 v{b}, 0, v{b}")
        e(f"v_cvt_pk_bf16_f32 v{MB+t}, v{a}, v{a}")
        e(f"v_lshlrev_b32 v{MB+t}, 16, v{MB+t}")
        e(f"v_cvt_pk_bf16_f32 v{b}, v{b}, v{b}")
        e(f"v_lshlrev_b32 v{b}, 16, v{b}")
        e(f"v_add_f32 v{b}, s68, v{b}")
        e(f"v_cvt_pk_bf16_f32 v{b}, v{b}, v{b}")
        e(f"v_lshlrev_b32 v{b}, 16, v{b}")
        e(f"v_sqrt_f32 v{b}, v{b}")
        e("s_nop 0")
        e(f"v_cvt_pk_bf16_f32 v{b}, v{b}, v{b}")
        e(f"v_lshlrev_b32 v{b}, 16, v{b}")
        e(f"v_rcp_f32 v{RP+2*t}, v{b}")
        e("s_nop 0")
        e(f"v_mov_b32 v{RP+2*t+1}, v{RP+2*t}")
        e(f"v_sub_f32 v{NM+2*t}, 0, v{MB+t}")
        e(f"v_sub_f32 v{NM+2*t+1}, 0, v{MB+t}")
    MT, RT = 152, 160
    for t in range(2):
        for r in range(4):
            e(f"ds_bpermute_b32 v{MT+4*t+r}, v{81+r}, v{MB+t}")
            e(f"ds_bpermute_b32 v{RT+4*t+r}, v{81+r}, v{RP+2*t}")
    stamp(e, 4)
    for q in range(7):
        for t in range(2):
            A = acc(q, t)
            for h in range(2):
                e(f"v_pk_fma_f32 v[{A+2*h}:{A+2*h+1}], v[{CSV+4*q+2*h}:{CSV+4*q+2*h+1}], v[{NM+2*t}:{NM+2*t+1}], v[{A+2*h}:{A+2*h+1}]")
            for h in range(2):
                e(f"v_pk_mul_f32 v[{A+2*h}:{A+2*h+1}], v[{A+2*h}:{A+2*h+1}], v[{RP+2*t}:{RP+2*t+1}]")
            e(f"v_cvt_pk_bf16_f32 v{A}, v{A}, v{A+1}")
            e(f"v_cvt_pk_bf16_f32 v{A+1}, v{A+2}, v{A+3}")
            e(f"v_pk_max_i16 v{A}, v{A}, 0")
            e(f"v_pk_max_i16 v{A+1}, v{A+1}, 0")
            e(f"buffer_store_dwordx2 v[{A}:{A+1}], v{HA[t]}, {sr(SH)}, 0 offen offset:{32*q}")
    e(f"s_mov_b32 s72, {16*ABT_PITCH}")
    e("s_waitcnt lgkmcnt(0)")
    for q in range(7, 9):
        A0, A1, SG = acc(q, 0), acc(q, 1), 168
        e(f"v_add_u32 v{SG}, {16*(q-7)}, v65")
        e(f"v_cmp_gt_u32 vcc, 0x101, v{SG}")
        e("s_nop 1")
        e(f"v_cndmask_b32 v{SG}, v68, v63, vcc")
        e(f"v_mul_f32 v{SG+1}, v{SG}, v86")
        for r in range(4):
            e(f"v_fma_f32 v{A0+r}, -v{MT+r}, v{CSV+4*q}, v{A0+r}")
            e(f"v_fma_f32 v{A1+r}, -v{MT+4+r}, v{CSV+4*q}, v{A1+r}")
        for r in range(4):
            e(f"v_mul_f32 v{A0+r}, v{RT+r}, v{A0+r}")
            e(f"v_mul_f32 v{A1+r}, v{RT+4+r}, v{A1+r}")
        for r in range(4):
            e(f"v_fma_f32 v{A0+r}, v{SG+(1 if r==0 else 0)}, v{A1+r}, v{A0+r}")
        e(f"v_cvt_pk_bf16_f32 v{SG+2}, v{A0}, v{A0+1}")
        e(f"v_cvt_pk_bf16_f32 v{SG+3}, v{A0+2}, v{A0+3}")
        so = "0" if q == 7 else "s72"
        e(f"buffer_store_dwordx2 v[{SG+2}:{SG+3}], v66, {sr(SAB)}, {so} offen")
        e("s_cmp_lg_u32 s22, 0")
        e(f"s_cbranch_scc1 KA_S0_{q}")
        e(f"v_cvt_pk_bf16_f32 v{SG+4}, v{A1}, v62")
        e("s_mov_b64 s[70:71], exec")
        e("s_mov_b64 exec, 0xffff")
        e(f"buffer_store_dword v{SG+4}, v67, {sr(SAB)}, {so} offen")
        e("s_mov_b64 exec, s[70:71]")
        e.label(f"KA_S0_{q}")
    if PROF:
        e("s_waitcnt vmcnt(0)")
    stamp(e, 5)
    stamps_out(e, 0, 6, 16, 17)
    e("s_cmp_lg_u32 s19, 0")
    e("s_cbranch_scc1 KA_END")
    e("s_cmp_lg_u32 s21, 1")
    e("s_cbranch_scc1 KA_END")
    e("s_lshl_b32 s65, s20, 5")
    e("v_add_u32 v65, s65, v0")
    e(f"s_mov_b32 s66, {ABT_PITCH}")
    e("v_mul_lo_u32 v66, v65, s66")
    e("v_add_u32 v66, 2052, v66")
    e("v_cmp_gt_u32 vcc, 32, v0")
    e("s_and_saveexec_b64 s[70:71], vcc")
    for d in range(15):
        e(f"buffer_store_dword v62, v66, {sr(SAB)}, 0 offen offset:{4*d}")
    e("s_mov_b64 exec, s[70:71]")
    e.label("KA_END")
    e("s_endpgm")
    return e.text(), 256 + 52

PM_PITCH = 36 * 4
PM_MAT = 33 * PM_PITCH
PM_WAVE = 2 * PM_MAT
RING = 30
RINGW = RING * 1024
PMBASE = 4 * RINGW
KB_LDS = PMBASE + 4 * PM_WAVE

def gen_kb():
    e = Emit()
    EPI = os.environ.get("EPI")
    def kst(k):
        if not EPI: stamp(e, k)
    def est(k):
        if EPI: stamp(e, k)
    e.label("fnet_kb_kernel")
    e("s_cmp_ge_u32 s2, 256")
    e("s_cbranch_scc1 KB_END")
    e("s_load_dwordx2 s[4:5], s[0:1], 0")
    e("s_load_dwordx4 s[8:11], s[0:1], 8")
    e("s_load_dwordx2 s[12:13], s[0:1], 64")
    e("s_load_dwordx2 s[16:17], s[0:1], 80")
    e("s_and_b32 s3, s2, 7")
    e("s_lshr_b32 s18, s2, 3")
    e("s_and_b32 s19, s3, 3")
    e("s_lshl_b32 s19, s19, 3")
    e("s_and_b32 s20, s18, 7")
    e("s_add_u32 s19, s19, s20")
    e("s_lshr_b32 s20, s3, 2")
    e("s_lshl_b32 s20, s20, 2")
    e("s_lshr_b32 s21, s18, 3")
    e("s_add_u32 s20, s20, s21")
    e("v_lshrrev_b32 v1, 6, v0")
    e("v_and_b32 v0, 63, v0")
    e("v_and_b32 v2, 15, v0")
    e("v_readfirstlane_b32 s21, v1")
    e("v_lshrrev_b32 v3, 4, v0")
    SX, SO, SH, SW2T, SAB, SWR, SWI = 24, 28, 32, 36, 40, 44, 48
    e("s_mov_b32 s61, 3584")
    e(f"s_mov_b32 s62, {ABT_PITCH}")
    e("s_lshl_b32 s52, s19, 5")
    e("s_lshl_b32 s53, s20, 5")
    e("s_sub_u32 s54, 2016, s52")
    e("s_sub_u32 s55, 480, s53")
    e("s_mul_i32 s56, s21, 896")
    e("s_lshl_b32 s57, s21, 9")
    e("v_lshlrev_b32 v4, 4, v3")
    e(f"v_mov_b32 v8, {OOB}")
    e("s_cmp_eq_u32 s21, 3")
    e("s_cselect_b32 s58, 33, 0")
    SETR = [64, 160]
    XR = SETR[1]
    for qa in range(3):
        e(f"v_add_u32 v7, {16*qa}, v2")
        e("v_add_u32 v9, s53, v7")
        e("v_mul_lo_u32 v36, v9, s62")
        e("v_add_u32 v38, 0x800, v36")
        e("v_add_u32 v38, v38, v4")
        e("v_cmp_gt_u32 vcc, s58, v7")
        e("s_nop 1")
        e(f"v_cndmask_b32 v{30+qa}, v8, v38, vcc")
        e("v_add_u32 v9, s52, v7")
        e("v_lshlrev_b32 v36, 12, v9")
        e("v_add_u32 v38, 0x800, v36")
        e("v_add_u32 v38, v38, v4")
        e(f"v_cndmask_b32 v{33+qa}, v8, v38, vcc")
    e("v_lshrrev_b32 v20, 3, v0")
    e("v_lshrrev_b32 v21, 4, v0")
    e("v_and_b32 v22, 7, v0")
    PA, PH, PW, PB, PBR = 10, 14, 16, 18, 36
    for pi in range(4):
        e("v_and_b32 v23, 1, v21")
        e(f"v_or_b32 v23, {pi<<1}, v23")
        e("v_xor_b32 v23, v22, v23")
        e(f"v_add_u32 v24, {8*pi}, v20")
        e("v_mul_lo_u32 v24, v24, s61")
        e(f"v_lshl_add_u32 v{PA+pi}, v23, 4, v24")
    for h in range(2):
        e(f"v_xor_b32 v23, {4*h}, v21")
        e("v_xor_b32 v23, v22, v23")
        e("v_lshlrev_b32 v23, 4, v23")
        e(f"v_add_u32 v24, {8*h}, v20")
        e("v_mul_lo_u32 v25, v24, s61")
        e(f"v_add_u32 v{PH+h}, v25, v23")
        e(f"v_lshl_add_u32 v{PW+h}, v24, 12, v23")
        e("v_mul_lo_u32 v25, v24, s62")
        e(f"v_add_u32 v{PB+h}, v25, v23")
        e("v_sub_u32 v24, 15, v24")
        e("v_mul_lo_u32 v25, v24, s62")
        e(f"v_add_u32 v{PBR+h}, v25, v23")
    e("s_mul_i32 s64, s53, s61"); e("s_add_u32 s64, s64, s56")
    e("s_mul_i32 s65, s55, s61"); e("s_add_u32 s65, s65, s56")
    e("s_mul_i32 s66, s52, s61"); e("s_add_u32 s66, s66, s56")
    e(f"s_add_u32 s67, s66, {16*3584}")
    e("s_mul_i32 s68, s54, s61"); e("s_add_u32 s68, s68, s56")
    e(f"s_add_u32 s69, s68, {16*3584}")
    e("s_lshl_b32 s70, s52, 12"); e("s_add_u32 s70, s70, s57")
    e(f"s_add_u32 s71, s70, {16*4096}")
    e("s_mul_i32 s72, s53, s62"); e("s_add_u32 s72, s72, s57")
    e(f"s_add_u32 s73, s72, {16*ABT_PITCH}")
    e("s_sub_u32 s74, 497, s53"); e("s_mul_i32 s74, s74, s62"); e("s_add_u32 s74, s74, s57")
    e(f"s_sub_u32 s75, s74, {16*ABT_PITCH}")
    e("v_add_u32 v23, s57, v4")
    e("s_add_u32 s59, s53, 32")
    e("s_mul_i32 s60, s59, s62")
    e("v_add_u32 v26, s60, v23")
    e("s_sub_u32 s60, 512, s59")
    e("s_mul_i32 s60, s60, s62")
    e("s_cmp_eq_u32 s59, 256")
    e(f"s_cselect_b32 s60, {OOB}, s60")
    e("v_add_u32 v27, s60, v23")
    e("s_add_u32 s59, s52, 32")
    e("s_lshl_b32 s59, s59, 12")
    e("v_add_u32 v28, s59, v23")
    e(f"s_mul_i32 s63, s21, {RINGW}")
    RS0, RS1, RA0, RA1 = 40, 41, 42, 43
    e("v_lshrrev_b32 v23, 1, v2")
    e("v_xor_b32 v23, v23, v3")
    e("v_lshlrev_b32 v23, 4, v23")
    e("v_lshl_add_u32 v23, v2, 7, v23")
    e(f"v_add_u32 v{RS0}, s63, v23")
    e(f"v_xor_b32 v{RS1}, 64, v{RS0}")
    e("v_lshrrev_b32 v23, 2, v2")
    e("v_and_b32 v24, 3, v2")
    e("v_lshl_add_u32 v25, v23, 3, v24")
    e("v_lshrrev_b32 v24, 1, v24")
    e("v_lshl_add_u32 v24, v23, 1, v24")
    e("v_xor_b32 v24, v24, v3")
    e("v_lshlrev_b32 v24, 4, v24")
    e("v_lshl_add_u32 v24, v25, 7, v24")
    e(f"v_add_u32 v{RA0}, s63, v24")
    e(f"v_xor_b32 v{RA1}, 64, v{RA0}")
    e("s_waitcnt lgkmcnt(0)")
    kst(0)
    make_srd(e, SAB, 16, 17, ABT_BYTES, ABT_OFF)
    make_srd(e, SWR, 8, 9, S * S * 2)
    make_srd(e, SWI, 10, 11, S * S * 2)
    make_srd(e, SH, 16, 17, H_BYTES, H_OFF)
    make_srd(e, SW2T, 16, 17, W2T_BYTES, W2T_OFF)
    make_srd(e, SX, 4, 5, S * D * 2)
    make_srd(e, SO, 12, 13, S * D * 2)
    xops = []
    for qa in range(3):
        xops.append(e.vm(f"buffer_load_dwordx4 {vr(XR+4*qa)}, v{30+qa}, {sr(SAB)}, 0 offen"))
    for qa in range(3):
        xops.append(e.vm(f"buffer_load_dwordx4 {vr(XR+12+4*qa)}, v{33+qa}, {sr(SWR)}, 0 offen"))
    NACC = 136
    def zacc(q, tq): return (4 * q + tq) * 4
    def cacc(qa, qb): return 64 + (3 * qa + qb) * 4
    def sacc(qa, qb): return 100 + (3 * qa + qb) * 4
    stages = [("D", k) for k in range(4)] + [("Z", k) for k in range(7)]
    def groups_of(si):
        kind, k = stages[si]
        R = SETR[si % 2]
        gl = []
        if kind == "Z":
            for b in range(2):
                pcs = [(SW2T, PA + pi, 64 + b) for pi in range(4)]
                rds = []
                for half in range(2):
                    for k2 in range(2):
                        rds.append((RA0 if k2 == 0 else RA1, 512 * half, R + 8 * (2 * b + half) + 4 * k2))
                gl.append((pcs, rds))
            for tq in range(4):
                pcs = [(SH, PH + h, 66 + tq) for h in range(2)]
                rds = [(RS0, 0, R + 32 + 8 * tq), (RS1, 0, R + 32 + 8 * tq + 4)]
                gl.append((pcs, rds))
        else:
            specs = [(SAB, PB, 72), (SAB, PB, 73), (SWR, PW, 70), (SWR, PW, 71), (SAB, PBR, 74), (SAB, PBR, 75), (SWI, PW, 70), (SWI, PW, 71)]
            for gi, (srd, pv, sb) in enumerate(specs):
                pcs = [(srd, pv + h, sb) for h in range(2)]
                rds = [(RS0, 0, R + 8 * gi), (RS1, 0, R + 8 * gi + 4)]
                gl.append((pcs, rds))
        return gl
    allg = []
    pend = []
    slot = 0
    for si in range(len(stages)):
        for gi, (pcs, rds) in enumerate(groups_of(si)):
            if slot % RING + len(pcs) > RING:
                slot += RING - slot % RING
            allg.append((si, gi, pcs, rds, slot % RING)); slot += len(pcs); pend.append(slot)
    dma_last = {}
    def issue_group(gidx):
        si, gi, pcs, rds, s0 = allg[gidx]
        kind, k = stages[si]
        for pn, (srd, pv, sb) in enumerate(pcs):
            e(f"s_add_u32 m0, s63, {(s0+pn)*1024}")
            if pn == 0:
                e(f"s_add_u32 s76, s{sb}, {128*k}")
            dma_last[gidx] = e.vm(f"buffer_load_dwordx4 v{pv}, {sr(srd)}, s76 offen lds")
    direct_last = {}
    def issue_direct(si):
        kind, k = stages[si]
        if kind != "D": return
        R = SETR[si % 2] + 64
        for mi, (srd, vo) in enumerate([(SAB, 26), (SWR, 28), (SAB, 27), (SWI, 28)]):
            for k2 in range(2):
                direct_last[si] = e.vm(f"buffer_load_dwordx4 {vr(R+8*mi+4*k2)}, v{vo}, {sr(srd)}, 0 offen offset:{128*k+64*k2}")
    def mfmas(si):
        if si < 0:
            return [f"v_mfma_f32_16x16x32_bf16 {ar(cacc(qa,qb))}, {vr(XR+4*qa)}, {vr(XR+12+4*qb)}, {ar(cacc(qa,qb))}" for qa in range(3) for qb in range(3)], []
        kind, k = stages[si]
        R = SETR[si % 2]
        early, late = [], []
        if kind == "Z":
            for k2 in range(2):
                for q in range(4):
                    for tq in range(4):
                        early.append(f"v_mfma_f32_16x16x32_bf16 {ar(zacc(q,tq))}, {vr(R+8*q+4*k2)}, {vr(R+32+8*tq+4*k2)}, {ar(zacc(q,tq))}")
        else:
            def areg(mat, q, k2):
                return (R + 32 * mat + 8 * q + 4 * k2) if q < 2 else (R + 64 + 16 * mat + 4 * k2)
            def breg(mat, q, k2):
                return (R + 32 * mat + 16 + 8 * q + 4 * k2) if q < 2 else (R + 64 + 16 * mat + 8 + 4 * k2)
            for k2 in range(2):
                for mat in range(2):
                    fa = cacc if mat == 0 else sacc
                    for qa in range(3):
                        for qb in range(3):
                            s = f"v_mfma_f32_16x16x32_bf16 {ar(fa(qa,qb))}, {vr(areg(mat,qa,k2))}, {vr(breg(mat,qb,k2))}, {ar(fa(qa,qb))}"
                            (late if (qa == 2 or qb == 2) else early).append(s)
        return early, late
    gstart = {}
    for gidx, g in enumerate(allg):
        gstart.setdefault(g[0], gidx)
    nissued = 0
    pieces_issued = 0
    while nissued < len(allg) and pend[nissued] <= RING:
        issue_group(nissued); nissued += 1
    issue_direct(0)
    if not os.environ.get("NOPF2"):
        e("v_lshlrev_b32 v57, 7, v0")
        e("s_lshr_b32 s22, s18, 3")
        e("s_sub_u32 s60, s54, 32")
        e("s_cmp_lt_u32 s22, 2")
        e("s_cselect_b32 s23, s52, s60")
        e("s_lshl_b32 s22, s22, 4")
        e("s_add_u32 s23, s23, s22")
        e("s_lshl_b32 s22, s21, 2")
        e("s_add_u32 s23, s23, s22")
        e("s_mul_i32 s23, s23, 3584")
        e.vm(f"buffer_load_dword v54, v57, {sr(SH)}, s23 offen")
        e("s_add_u32 s23, s23, 8192")
        e.vm(f"buffer_load_dword v55, v57, {sr(SH)}, s23 offen")
        e("s_and_b32 s22, s18, 7")
        e("s_sub_u32 s60, s55, 32")
        e("s_cmp_lt_u32 s22, 4")
        e("s_cselect_b32 s23, s53, s60")
        e("s_lshl_b32 s22, s22, 3")
        e("s_add_u32 s23, s23, s22")
        e("s_lshl_b32 s22, s21, 1")
        e("s_add_u32 s23, s23, s22")
        e("s_mul_i32 s23, s23, 3584")
        e.vm(f"buffer_load_dword v56, v57, {sr(SW2T)}, s23 offen")
    for a in range(NACC):
        e(f"v_accvgpr_write_b32 a{a}, 0")
    e(f"v_mul_u32_u24 v49, {PM_PITCH}, v2")
    e("v_lshl_add_u32 v49, v3, 4, v49")
    e(f"s_mul_i32 s59, s21, {PM_WAVE}")
    e(f"s_add_u32 s59, s59, {PMBASE}")
    e("v_add_u32 v49, s59, v49")
    e("s_and_b32 s77, s21, 1")
    e("s_lshr_b32 s78, s21, 1")
    e("s_cmp_eq_u32 s77, 0")
    e("s_cselect_b32 s22, s53, s55")
    e("s_cmp_eq_u32 s78, 0")
    e("s_cselect_b32 s23, s52, s54")
    e("v_add_u32 v46, s23, v2")
    e("v_lshlrev_b32 v46, 10, v46")
    e("v_lshl_add_u32 v46, v3, 4, v46")
    e("s_lshl_b32 s22, s22, 1")
    e("v_add_u32 v46, s22, v46")
    e("v_add_u32 v47, 0x4000, v46")
    e("s_xor_b32 s59, s77, s78")
    e(f"s_mul_i32 s59, s59, {PM_MAT}")
    e(f"s_add_u32 s59, s59, {PMBASE}")
    e("v_lshlrev_b32 v44, 3, v3")
    e("v_sub_u32 v45, 25, v44")
    e("s_cmp_eq_u32 s77, 0")
    e("s_cselect_b64 vcc, -1, 0")
    e("v_cndmask_b32 v44, v45, v44, vcc")
    e("v_sub_u32 v45, 32, v2")
    e("s_cmp_eq_u32 s78, 0")
    e("s_cselect_b64 vcc, -1, 0")
    e("v_cndmask_b32 v45, v45, v2, vcc")
    e(f"v_mul_u32_u24 v45, {PM_PITCH}, v45")
    e("v_lshl_add_u32 v44, v44, 2, v45")
    e("v_add_u32 v44, s59, v44")
    e(f"s_mov_b32 s22, {16*PM_PITCH}")
    e(f"s_mov_b32 s23, {-16*PM_PITCH}")
    e("s_cmp_eq_u32 s78, 0")
    e("s_cselect_b32 s59, s22, s23")
    e("v_add_u32 v45, s59, v44")
    e("s_and_b32 s59, s20, 7")
    e("s_cmp_eq_u32 s59, 0")
    e("s_cselect_b64 s[58:59], 0xffff, 0")
    e("v_mov_b32 v39, 0")
    e("s_mov_b32 s56, 0x00010001")
    e("s_mov_b32 s57, 0x00010001")
    e("v_lshlrev_b32 v48, 4, v0")
    e("v_add_u32 v50, s63, v48")
    for k in range(3):
        e(f"s_sub_u32 s22, s21, {1+k}")
        e("s_and_b32 s22, s22, 3")
        e(f"s_mul_i32 s22, s22, {RINGW}")
        e(f"v_add_u32 v{51+k}, s22, v48")
    kst(1)
    TMP = [128, 140, 224, 236]
    extra = {}
    ex = []
    for qa in range(3):
        for qb in range(3):
            T0 = TMP[(3 * qa + qb) % 4]
            ex.append([f"v_accvgpr_read_b32 v{T0+r}, a{cacc(qa,qb)+r}" for r in range(2)])
            ex.append([f"v_accvgpr_read_b32 v{T0+r}, a{cacc(qa,qb)+r}" for r in range(2, 4)])
            ex.append([f"v_accvgpr_read_b32 v{T0+4+r}, a{sacc(qa,qb)+r}" for r in range(2)])
            ex.append([f"v_accvgpr_read_b32 v{T0+4+r}, a{sacc(qa,qb)+r}" for r in range(2, 4)])
            if qa == 0:
                ex.append([f"v_cndmask_b32 v{T0+4}, v{T0+4}, v39, s[58:59]"])
            for r in range(4):
                ex.append([f"v_add_f32 v{T0+8+r}, v{T0+r}, v{T0+4+r}", f"v_sub_f32 v{T0+4+r}, v{T0+r}, v{T0+4+r}"])
            off = 16 * qb * PM_PITCH + 64 * qa
            c = []
            if qa == 2 and qb == 2: c.append("s_mov_b64 exec, 1")
            elif qa == 2: c.append("s_mov_b64 exec, 0xffff")
            elif qb == 2: c.append("s_mov_b64 exec, s[56:57]")
            c.append(f"ds_write_b128 v49, {vr(T0+8)} offset:{off}")
            c.append(f"ds_write_b128 v49, {vr(T0+4)} offset:{off+PM_MAT}")
            if qa == 2 or qb == 2: c.append("s_mov_b64 exec, -1")
            ex.append(c)
    h = (len(ex) + 1) // 2
    extra[5] = ex[:h]; extra[6] = ex[h:]
    YT = [128, 224]
    ex = []
    for tq in range(2):
        for pw in range(4):
            ex.append([f"ds_read_b128 {vr(YT[tq] + 8*pw + 4*k)}, v{44+tq} offset:{pw*PM_WAVE + 16*k}" for k in range(2)])
    extra[7] = ex
    ex = []
    for tq in range(2):
        b = YT[tq]
        for k in range(8):
            ex.append([f"v_add_f32 v{b+k}, v{b+k}, v{b+8+k}", f"v_add_f32 v{b+16+k}, v{b+16+k}, v{b+24+k}"])
        for k in range(0, 8, 2):
            ex.append([f"v_add_f32 v{b+k}, v{b+k}, v{b+16+k}", f"v_add_f32 v{b+k+1}, v{b+k+1}, v{b+17+k}"])
    extra[8] = ex
    XO = 136
    extra[9] = [[("vm", f"buffer_load_dwordx4 {vr(XO)}, v46, {sr(SX)}, 0 offen")], [("vm", f"buffer_load_dwordx4 {vr(XO+4)}, v47, {sr(SX)}, 0 offen")]]
    xbox = []
    def emit_chunk(c):
        for i in c:
            if isinstance(i, tuple): xbox.append(e.vm(i[1]))
            else: e(i)
    LAG = int(os.environ.get("LAG", "2"))
    nds = [0]
    rd_last = {}
    def piece_chunks(glist):
        pl = []
        for gidx in glist:
            si_, gi, pcs, rds, s0 = allg[gidx]
            kind, k = stages[si_]
            for pn, (srd, pv, sb) in enumerate(pcs):
                pl.append((gidx, pn, srd, pv, sb, s0, k))
        def setm(p):
            gidx, pn, srd, pv, sb, s0, k = p
            e(f"s_add_u32 m0, s63, {(s0+pn)*1024}")
        def sets(p):
            gidx, pn, srd, pv, sb, s0, k = p
            if pn == 0: e(f"s_add_u32 s76, s{sb}, {128*k}")
        def load(p):
            gidx, pn, srd, pv, sb, s0, k = p
            dma_last[gidx] = e.vm(f"buffer_load_dwordx4 v{pv}, {sr(srd)}, s76 offen lds")
        out = []
        out.append((2, lambda p=pl[0]: (setm(p), sets(p))))
        for i, p in enumerate(pl):
            nx = pl[i + 1] if i + 1 < len(pl) else None
            def f(p=p, nx=nx):
                load(p)
                if nx:
                    setm(nx); sets(nx)
            out.append((1 + (0 if nx is None else (2 if nx[1] == 0 else 1)), f))
        return out
    def wait_ds(idx):
        n = nds[0] - idx - 1
        e(f"s_waitcnt lgkmcnt({min(n, 15)})")
    for si in range(len(stages) + 1):
        early, late = mfmas(si - 1)
        oth = []
        exq = list(extra.get(si, [])) if not (os.environ.get("NOEX") and si < 9) else []
        def ex_chunk(c):
            def f():
                for i in c:
                    if isinstance(i, tuple): xbox.append(e.vm(i[1]))
                    else:
                        e(i)
                        if i.startswith("ds_"): nds[0] += 1
            return (len(c), f)
        if si < len(stages):
            gids = [g for g in range(len(allg)) if allg[g][0] == si]
            def add_free(g):
                global_n = None
                nonlocal nissued
                todo = []
                while nissued < len(allg) and pend[nissued] <= pend[g] + RING:
                    todo.append(nissued); nissued += 1
                if todo:
                    oth.append((1, lambda g=g: wait_ds(rd_last[g])))
                    oth.extend(piece_chunks(todo))
            for n, g in enumerate(gids):
                _, _, pcs, rds, s0 = allg[g]
                oth.append((1, lambda g=g: e.wait_vm(dma_last[g])))
                for ri, (areg_, off, dst) in enumerate(rds):
                    def f(areg_=areg_, off=off, dst=dst, s0=s0, g=g):
                        e(f"ds_read_b128 {vr(dst)}, v{areg_} offset:{s0*1024 + off}")
                        rd_last[g] = nds[0]; nds[0] += 1
                    oth.append((1, f))
                if n >= LAG:
                    add_free(gids[n - LAG])
            for n in range(max(0, len(gids) - LAG), len(gids)):
                add_free(gids[n])
            if exq:
                merged = []
                step = len(oth) / len(exq)
                pos = 0.0; xi = 0
                for oi, o in enumerate(oth):
                    merged.append(o)
                    while xi < len(exq) and (xi + 1) * step <= oi + 1 + 1e-9:
                        merged.append(ex_chunk(exq[xi])); xi += 1
                while xi < len(exq):
                    merged.append(ex_chunk(exq[xi])); xi += 1
                oth = merged
            oth.append((1, lambda: e("s_waitcnt lgkmcnt(0)")))
            if si == 6:
                oth.append((1, lambda: e("s_barrier")))
            if si + 1 < len(stages) and stages[si + 1][0] == "D":
                oth.append((8, lambda si=si: issue_direct(si + 1)))
        if si == 0:
            e.wait_vm(xops[-1])
        ml = early + late
        tot = sum(c for c, _ in oth) - (8 if (si + 1 < len(stages) and stages[si + 1][0] == "D") else 0)
        ratio = tot / max(1, len(ml))
        credit = 0.0
        oi = 0
        for mi, m in enumerate(ml):
            if late and mi == len(early):
                e.wait_vm(direct_last[si - 1])
            e(m)
            credit += ratio
            while oi < len(oth) and credit > 0 and not (oth[oi][0] == 8):
                credit -= oth[oi][0]; oth[oi][1](); oi += 1
        while oi < len(oth):
            oth[oi][1](); oi += 1
        if si == 4: kst(2)
    kst(3)
    est(0)
    e("s_nop 7")
    e("s_nop 7")
    ZO = 64
    for w in range(4):
        e(f"s_cmp_lg_u32 s21, {w}")
        e(f"s_cbranch_scc1 KB_ZW_{w}")
        for d in range(4):
            if d == w: continue
            k = (d - w - 1) % 4
            for tl in range(4):
                q = 2 * (d & 1) + (tl & 1); tq = 2 * (d >> 1) + (tl >> 1)
                e(f"ds_write_b128 v50, {ar(zacc(q,tq))} offset:{k*4096 + tl*1024}")
        for tl in range(4):
            q = 2 * (w & 1) + (tl & 1); tq = 2 * (w >> 1) + (tl >> 1)
            for r in range(4):
                e(f"v_accvgpr_read_b32 v{ZO+4*tl+r}, a{zacc(q,tq)+r}")
        e.label(f"KB_ZW_{w}")
    e("s_waitcnt lgkmcnt(0)")
    est(1)
    e("s_barrier")
    est(2)
    for k in range(3):
        for tl in range(4):
            e(f"ds_read_b128 {vr(80+16*k+4*tl)}, v{51+k} offset:{k*4096 + tl*1024}")
    for k in range(3):
        e(f"s_waitcnt lgkmcnt({8-4*k})")
        for tl in range(4):
            for r in range(4):
                e(f"v_add_f32 v{ZO+4*tl+r}, v{ZO+4*tl+r}, v{80+16*k+4*tl+r}")
    est(3)
    e.wait_vm(xbox[-1])
    for wc in range(2):
        e(f"s_cmp_lg_u32 s77, {wc}")
        e(f"s_cbranch_scc1 KB_FIN_{wc}")
        for tq in range(2):
            for half in range(2):
                tl = half + 2 * tq
                for r in range(4):
                    k8 = 4 * half + r
                    yi = YT[tq] + (7 - k8 if wc else k8)
                    zr = ZO + 4 * tl + r
                    xr = XO + 4 * tq + (k8 >> 1)
                    e(f"v_add_f32 v{zr}, v{zr}, v{yi}")
                    if k8 & 1:
                        e(f"v_and_b32 v{152+(k8&3)}, 0xffff0000, v{xr}")
                    else:
                        e(f"v_lshlrev_b32 v{152+(k8&3)}, 16, v{xr}")
                    e(f"v_add_f32 v{zr}, v{zr}, v{152+(k8&3)}")
            for d in range(4):
                tl = (d >> 1) + 2 * tq
                z0 = ZO + 4 * tl + 2 * (d & 1)
                e(f"v_cvt_pk_bf16_f32 v{144+4*tq+d}, v{z0}, v{z0+1}")
        e.label(f"KB_FIN_{wc}")
    e("s_nop 1")
    e(f"buffer_store_dwordx4 v[144:147], v46, {sr(SO)}, 0 offen")
    e(f"buffer_store_dwordx4 v[148:151], v47, {sr(SO)}, 0 offen")
    if PROF:
        e("s_waitcnt vmcnt(0)")
    stamp(e, 4)
    stamps_out(e, 1, 5, 16, 17)
    e.label("KB_END")
    e("s_endpgm")
    return e.text(), 256 + NACC

HEADER = open("parallel_sum__spectral_fnet__dense_activation_relu__prompt.s.ref").read().split("; Override launch")[0]

def main(out):
    ka, ka_v = gen_ka()
    kb, kb_v = gen_kb()
    t = HEADER
    t += f"; @launch kernel=fnet_ka_kernel grid=(256,1,1) block=(256,1,1) lds={KA_LDS}\n"
    t += f"; @launch kernel=fnet_kb_kernel grid=(256,1,1) block=(256,1,1) lds={KB_LDS}\n"
    t += '.amdgcn_target "amdgcn-amd-amdhsa--gfx950"\n.text\n'
    for name, body in (("fnet_ka_kernel", ka), ("fnet_kb_kernel", kb)):
        t += f".globl {name}\n.p2align 8\n.type {name},@function\n" + body
    t += '.section .rodata,"a"\n'
    for name, nv in (("fnet_ka_kernel", ka_v), ("fnet_kb_kernel", kb_v)):
        t += f""".p2align 6
.amdhsa_kernel {name}
  .amdhsa_next_free_vgpr {nv}
  .amdhsa_next_free_sgpr 96
  .amdhsa_accum_offset 256
  .amdhsa_group_segment_fixed_size 0
  .amdhsa_kernarg_size 88
  .amdhsa_user_sgpr_count 2
  .amdhsa_user_sgpr_kernarg_segment_ptr 1
  .amdhsa_system_sgpr_workgroup_id_x 1
.end_amdhsa_kernel
"""
    open(out, "w").write(t)

if __name__ == "__main__":
    main(sys.argv[1] if len(sys.argv) > 1 else "parallel_sum__spectral_fnet__dense_activation_relu__prompt.s")
```
